```python
import torch

def _softmax(x, axis=-1):
    return torch.softmax(x, dim=axis)
def _gelu(x):
    return torch.nn.functional.gelu(x, approximate="tanh")
def _silu(x):
    return torch.nn.functional.silu(x)
def _sigmoid(x):
    return torch.sigmoid(x)
def _layernorm(x, axis=-1, eps=1e-5):
    m = x.mean(dim=axis, keepdim=True)
    v = x.var(dim=axis, keepdim=True, unbiased=False)
    return (x - m) / torch.sqrt(v + eps)
def _scatter_add(tgt, idx, src, axis=0):
    return tgt.clone().index_add_(axis, idx, src)
def _segment_sum(src, seg, n):
    out = torch.zeros((n,) + src.shape[1:], dtype=src.dtype)
    return out.index_add_(0, seg, src)
def _pad(x, pw):
    flat = tuple(v for pair in reversed(pw) for v in pair)
    return torch.nn.functional.pad(x, flat)

kernel_name = 'standalone__sliding_block_cached__decode'

def setup_inputs():

    _w = (lambda a: (lambda t: t.to(torch.bfloat16) if t.is_floating_point() else t)(torch.as_tensor(a)))
    B, Sq, D = 2, 1, 640
    Hq, Hkv, Sk, Dh = 32, 32, 4096, 128
    assert Hq % Hkv == 0, (Hq, Hkv)
    return {
        "x": _w((lambda *s: torch.randn(*s, dtype=torch.bfloat16) * 0.8)(B, Sq, D)),
        "k_cache": _w((lambda *s: torch.randn(*s, dtype=torch.bfloat16) * 0.8)(B, Hkv, Sk, Dh)),
        "v_cache": _w((lambda *s: torch.randn(*s, dtype=torch.bfloat16) * 0.05)(B, Hkv, Sk, Dh)),
        "wq": _w((lambda *s: torch.randn(*s, dtype=torch.bfloat16) * 0.8)(D, Hq * Dh) * (D ** -0.5)),
        "wo": _w((lambda *s: torch.randn(*s, dtype=torch.bfloat16) * 0.05)(Hq * Dh, D) * ((Hq * Dh) ** -0.5)),
    }

def reference(x, k_cache, v_cache, wq, wo):
    B, Sq, D = x.shape
    Hq, Dh = 32, 128
    Hkv, Sk = k_cache.shape[1], k_cache.shape[2]
    W = min(4096, max(256, Sk // 4))
    rep = Hq // Hkv
    q = (lambda x, *d: x.permute(*d))((x @ wq).reshape(B, Sq, Hq, Dh), 0, 2, 1, 3)
    k = (lambda x, n, axis: torch.repeat_interleave(x, n, dim=axis))(k_cache[:, :, Sk - W:, :], rep, axis=1)
    v = (lambda x, n, axis: torch.repeat_interleave(x, n, dim=axis))(v_cache[:, :, Sk - W:, :], rep, axis=1)
    scores = torch.einsum("bhqd,bhkd->bhqk", q, k) * (Dh ** -0.5)
    p = _softmax(scores, axis=-1)
    o = torch.einsum("bhqk,bhkd->bhqd", p, v)
    return (lambda x, *d: x.permute(*d))(o, 0, 2, 1, 3).reshape(B, Sq, Hq * Dh) @ wo
```

```python
import sys

NAME = "standalone__sliding_block_cached__decode_kernel"

WS_QP = 0
WS_OP = 256 * 1024
WS_YP = 512 * 1024
WS_BYTES = 768 * 1024

L_QPART = 0
L_QBF = 32768
L_WMAX = 33024
L_OPART = 0
OPART_STRIDE = 528
L_YPART = 33280
LDS_BYTES = 33280 + 20480 + 256

SPIN_MAX = 400000

out = []
def e(s=""):
    out.append(s)

def header():
    e("; Fused decode attention: q-proj -> sliding window attention (flash-decoding split) -> out-proj")
    e(f"; @launch grid=(256,1,1) block=(576,1,1) lds={LDS_BYTES}")
    e('.amdgcn_target "amdgcn-amd-amdhsa--gfx950"')
    e(".text")
    e(f".globl {NAME}")
    e(".p2align 8")
    e(f".type {NAME},@function")
    e(f"{NAME}:")

def srd(d, p, nbytes):
    e(f"    s_mov_b32 s{d}, s{p}")
    e(f"    s_and_b32 s{d+1}, s{p+1}, 0xffff")
    e(f"    s_mov_b32 s{d+2}, {nbytes:#x}")
    e(f"    s_mov_b32 s{d+3}, 0x00020000")

sK, sV, sWQ, sWO, sX, sWS, sOUT, sDBG = 20, 24, 28, 32, 36, 40, 44, 48
sH, sJ, sB, sS, sW = 52, 53, 54, 55, 56

vWQ = 16
vX = 28
vK = 36
vV = 68
vWO = 100
vA = 116
vT = 132
NVGPR = 152

def gen():
    header()
    e("    s_cmp_ge_u32 s2, 256")
    e("    s_cbranch_scc1 L_end")
    e("    s_load_dwordx16 s[4:19], s[0:1], 0")
    e("    v_and_b32 v1, 63, v0              ; lane")
    e("    v_lshrrev_b32 v2, 6, v0")
    e("    s_and_b32 s3, s2, 7")
    e("    v_readfirstlane_b32 s56, v2")
    e("    s_lshr_b32 s57, s2, 3")
    e("    s_lshr_b32 s58, s57, 3")
    e("    s_lshl_b32 s52, s3, 2")
    e("    s_add_u32 s52, s52, s58           ; h")
    e("    s_and_b32 s53, s57, 7             ; j")
    e("    s_lshr_b32 s54, s53, 2            ; b")
    e("    s_and_b32 s55, s53, 3             ; s")
    e("    s_waitcnt lgkmcnt(0)")
    srd(sX, 4, 2 * 640 * 2)
    srd(sK, 6, 2 * 32 * 4096 * 128 * 2)
    srd(sV, 8, 2 * 32 * 4096 * 128 * 2)
    srd(sWQ, 10, 640 * 4096 * 2)
    srd(sWO, 12, 4096 * 640 * 2)
    srd(sOUT, 14, 2 * 640 * 2)
    srd(sDBG, 16, 256)
    srd(sWS, 18, WS_BYTES)
    e("    s_cmp_eq_u32 s56, 8")
    e("    s_cbranch_scc1 L_control")
    e("    v_lshrrev_b32 v3, 4, v1           ; g = lane/16")
    e("    v_and_b32 v4, 15, v1              ; c16")
    e("    s_mul_i32 s60, s53, 80")
    e("    s_lshl_b32 s61, s56, 2")
    e("    s_add_u32 s60, s60, s61")
    e("    v_add_u32 v5, s60, v3             ; row_0")
    e("    v_lshlrev_b32 v6, 13, v5")
    e("    v_lshl_add_u32 v6, v4, 4, v6")
    e("    s_lshl_b32 s62, s52, 8")
    e("    v_add_u32 v6, s62, v6")
    e("    v_add_u32 v7, 0x40000, v6         ; i=1 (+32 rows)")
    e("    s_mov_b32 s63, 0x80000")
    e("    s_cmp_lt_u32 s56, 4")
    e("    s_cselect_b32 s63, s63, 0x7f000000")
    e("    v_add_u32 v8, s63, v6")
    e(f"    buffer_load_dwordx4 v[{vWQ}:{vWQ+3}], v6, s[{sWQ}:{sWQ+3}], 0 offen")
    e(f"    buffer_load_dwordx4 v[{vWQ+4}:{vWQ+7}], v7, s[{sWQ}:{sWQ+3}], 0 offen")
    e(f"    buffer_load_dwordx4 v[{vWQ+8}:{vWQ+11}], v8, s[{sWQ}:{sWQ+3}], 0 offen")
    e("    v_lshlrev_b32 v9, 1, v5")
    e("    s_mov_b32 s63, 128")
    e("    s_cmp_lt_u32 s56, 4")
    e("    s_cselect_b32 s63, s63, 0x7f000000")
    e("    v_add_u32 v10, s63, v9")
    for i in range(3):
        for bb in range(2):
            r = vX + i * 2 + bb
            if i < 2:
                e(f"    buffer_load_ushort v{r}, v9, s[{sX}:{sX+3}], 0 offen offset:{i*64 + bb*1280}")
            else:
                e(f"    buffer_load_ushort v{r}, v10, s[{sX}:{sX+3}], 0 offen offset:{bb*1280}")
    e("    s_lshl_b32 s65, s54, 25")
    e("    s_lshl_b32 s66, s52, 20")
    e("    s_add_u32 s65, s65, s66")
    e("    s_lshl_b32 s66, s55, 16")
    e("    s_add_u32 s65, s65, s66")
    e("    s_add_u32 s65, s65, 0xc0000")
    e("    s_lshl_b32 s66, s56, 13")
    e("    s_add_u32 s65, s65, s66")
    e("    v_lshlrev_b32 v11, 4, v1")
    e("    v_add_u32 v11, s65, v11")
    e("    v_add_u32 v12, 0x1000, v11")
    for i in range(8):
        vo = 11 if i < 4 else 12
        e(f"    buffer_load_dwordx4 v[{vK+4*i}:{vK+4*i+3}], v{vo}, s[{sK}:{sK+3}], 0 offen offset:{(i%4)*1024}")
    for i in range(8):
        vo = 11 if i < 4 else 12
        e(f"    buffer_load_dwordx4 v[{vV+4*i}:{vV+4*i+3}], v{vo}, s[{sV}:{sV+3}], 0 offen offset:{(i%4)*1024}")
    e("    v_mul_u32_u24 v13, 205, v1")
    e("    v_lshrrev_b32 v13, 11, v13        ; rg")
    e("    v_mul_u32_u24 v14, 10, v13")
    e("    v_sub_u32 v14, v1, v14            ; ch")
    e("    s_lshl_b32 s67, s52, 7")
    e("    s_lshl_b32 s68, s56, 4")
    e("    s_add_u32 s67, s67, s68           ; h*128 + 16w")
    e("    v_lshl_add_u32 v15, v13, 2, s67   ; row (i=0)")
    e("    v_mul_u32_u24 v15, 1280, v15")
    e("    v_lshl_add_u32 v15, v14, 4, v15")
    e("    s_mul_i32 s68, s53, 160")
    e("    v_add_u32 v15, s68, v15")
    e("    s_mov_b32 s70, -1")
    e("    s_mov_b32 s71, 0xff               ; lanes < 40")
    e("    s_mov_b64 exec, s[70:71]")
    for i in range(4):
        e(f"    buffer_load_dwordx4 v[{vWO+4*i}:{vWO+4*i+3}], v15, s[{sWO}:{sWO+3}], 0 offen offset:{i*1280}")
    e("    s_mov_b64 exec, -1")
    for a in range(16):
        e(f"    v_mov_b32 v{vA+a}, 0")
    e("    s_waitcnt vmcnt(20)")
    for i in range(3):
        for bb in range(2):
            e(f"    v_lshlrev_b32 v{vT+i*2+bb}, 16, v{vX+i*2+bb}")
    for i in range(3):
        for bb in range(2):
            for ee in range(4):
                e(f"    v_dot2c_f32_bf16 v{vA+bb*8+2*ee}, v{vWQ+4*i+ee}, v{vX+i*2+bb}")
                e(f"    v_dot2c_f32_bf16 v{vA+bb*8+2*ee+1}, v{vWQ+4*i+ee}, v{vT+i*2+bb}")
    e("    s_lshl_b32 s60, s56, 12")
    e("    v_lshlrev_b32 v5, 10, v3")
    e("    v_lshl_add_u32 v5, v4, 5, v5")
    e("    v_add_u32 v5, s60, v5")
    e(f"    ds_write_b128 v5, v[{vA}:{vA+3}] offset:{L_QPART}")
    e(f"    ds_write_b128 v5, v[{vA+4}:{vA+7}] offset:{L_QPART+16}")
    e(f"    ds_write_b128 v5, v[{vA+8}:{vA+11}] offset:{L_QPART+512}")
    e(f"    ds_write_b128 v5, v[{vA+12}:{vA+15}] offset:{L_QPART+528}")
    e("    s_waitcnt lgkmcnt(0)")
    e("    s_barrier                          ; A")
    e("    s_barrier                          ; B (q ready)")
    e("    v_lshlrev_b32 v5, 4, v4")
    e(f"    ds_read_b128 v[16:19], v5 offset:{L_QBF}")
    e("    s_waitcnt lgkmcnt(0)")
    for i in range(8):
        e(f"    s_waitcnt vmcnt({19-i})")
        e(f"    v_mov_b32 v{20+i}, 0")
        for ee in range(4):
            e(f"    v_dot2c_f32_bf16 v{20+i}, v{vK+4*i+ee}, v{16+ee}")
    for sh in (8, 4, 2, 1):
        for i in range(8):
            e(f"    v_add_f32_dpp v{20+i}, v{20+i}, v{20+i} row_ror:{sh} row_mask:0xf bank_mask:0xf")
    c = (128 ** -0.5) * 1.4426950408889634
    import struct
    cbits = struct.unpack("<I", struct.pack("<f", c))[0]
    e(f"    s_mov_b32 s60, {cbits:#x}")
    for i in range(8):
        e(f"    v_mul_f32 v{20+i}, s60, v{20+i}")
    e("    v_max3_f32 v28, v20, v21, v22")
    e("    v_max3_f32 v29, v23, v24, v25")
    e("    v_max3_f32 v28, v28, v26, v27")
    e("    v_max_f32 v28, v28, v29")
    e("    s_nop 1")
    e("    v_readlane_b32 s60, v28, 0")
    e("    v_readlane_b32 s61, v28, 16")
    e("    v_readlane_b32 s62, v28, 32")
    e("    v_readlane_b32 s63, v28, 48")
    e("    s_nop 1")
    e("    v_mov_b32 v29, s60")
    e("    v_max_f32 v29, s61, v29")
    e("    v_max_f32 v29, s62, v29")
    e("    v_max_f32 v29, s63, v29")
    e("    s_lshl_b32 s60, s56, 2")
    e("    v_mov_b32 v5, s60")
    e(f"    ds_write_b32 v5, v29 offset:{L_WMAX}")
    e("    s_waitcnt lgkmcnt(0)")
    e("    s_barrier                          ; M")
    e("    v_mov_b32 v5, 0")
    e(f"    ds_read_b128 v[28:31], v5 offset:{L_WMAX}")
    e(f"    ds_read_b128 v[32:35], v5 offset:{L_WMAX+16}")
    e("    s_waitcnt lgkmcnt(0)")
    e("    v_max3_f32 v28, v28, v29, v30")
    e("    v_max3_f32 v32, v31, v32, v33")
    e("    v_max3_f32 v28, v28, v34, v35")
    e("    v_max_f32 v28, v28, v32")
    for i in range(8):
        e(f"    v_sub_f32 v{20+i}, v{20+i}, v28")
    for i in range(8):
        e(f"    v_exp_f32 v{20+i}, v{20+i}")
    e("    s_nop 0")
    e("    v_add_f32 v29, v20, v21")
    e("    v_add_f32 v30, v22, v23")
    e("    v_add_f32 v31, v24, v25")
    e("    v_add_f32 v32, v26, v27")
    e("    v_add_f32 v29, v29, v30")
    e("    v_add_f32 v31, v31, v32")
    e("    v_add_f32 v29, v29, v31")
    for a in range(8):
        e(f"    v_mov_b32 v{vA+a}, 0")
    for i in range(8):
        e(f"    s_waitcnt vmcnt({11-i})")
        for ee in range(4):
            e(f"    v_lshlrev_b32 v{vT+2*ee}, 16, v{vV+4*i+ee}")
            e(f"    v_and_b32 v{vT+2*ee+1}, 0xffff0000, v{vV+4*i+ee}")
        for a in range(8):
            e(f"    v_fmac_f32 v{vA+a}, v{20+i}, v{vT+a}")
    e("    s_lshl_b32 s60, s56, 2")
    e("    v_add_u32 v5, s60, v3             ; part")
    e(f"    v_mul_u32_u24 v5, {OPART_STRIDE}, v5")
    e("    v_lshl_add_u32 v6, v4, 5, v5")
    e(f"    ds_write_b128 v6, v[{vA}:{vA+3}] offset:{L_OPART}")
    e(f"    ds_write_b128 v6, v[{vA+4}:{vA+7}] offset:{L_OPART+16}")
    e(f"    ds_write_b32 v5, v29 offset:{L_OPART+512}")
    e("    s_waitcnt lgkmcnt(0)")
    e("    s_barrier                          ; C")
    e("    s_cmp_ge_u32 s56, 3")
    e("    s_cbranch_scc1 L_skip_comb")
    e("    v_lshlrev_b32 v5, 2, v0           ; t*4")
    for half in range(2):
        for p in range(16):
            e(f"    ds_read_b32 v{vK+p}, v5 offset:{L_OPART + (half*16+p)*OPART_STRIDE}")
        e("    s_waitcnt lgkmcnt(0)")
        if half == 0:
            e(f"    v_add_f32 v6, v{vK}, v{vK+1}")
            rng = range(2, 16)
        else:
            rng = range(0, 16)
        for p in rng:
            e(f"    v_add_f32 v6, v6, v{vK+p}")
    e("    v_cmp_eq_u32 vcc, 129, v0")
    e("    s_nop 1")
    e("    v_cndmask_b32 v6, v6, v28, vcc")
    e("    v_cmp_eq_u32 vcc, -1, v6")
    e("    v_mov_b32 v7, 0x7fc00000")
    e("    s_nop 0")
    e("    v_cndmask_b32 v6, v6, v7, vcc")
    e("    s_lshl_b32 s60, s54, 5")
    e("    s_add_u32 s60, s60, s52")
    e("    s_lshl_b32 s60, s60, 2")
    e("    s_add_u32 s60, s60, s55")
    e("    s_lshl_b32 s60, s60, 10")
    e(f"    s_add_u32 s60, s60, {WS_OP}")
    e("    v_add_u32 v5, s60, v5")
    e("    v_cmp_gt_u32 vcc, 130, v0")
    e("    s_and_saveexec_b64 s[72:73], vcc")
    e(f"    buffer_store_dword v6, v5, s[{sWS}:{sWS+3}], 0 offen sc1")
    e("    s_mov_b64 exec, s[72:73]")
    e("L_skip_comb:")
    e("    s_lshl_b32 s60, s52, 12           ; h*4096")
    e(f"    s_add_u32 s60, s60, {WS_OP}")
    e("    s_lshl_b32 s61, s56, 6            ; 16w*4")
    e("    s_add_u32 s61, s61, s60")
    e("    v_lshl_add_u32 v5, v13, 4, s61    ; + 4rg*4")
    e("    v_add_u32 v6, 0x20000, v5         ; b'=1")
    e("    v_mov_b32 v7, s60")
    e("    v_add_u32 v8, 0x20000, v7")
    e("    s_mov_b32 s64, 0")
    e("    s_mov_b64 exec, s[70:71]")
    e("L_poll2:")
    for bb in range(2):
        for ss in range(4):
            r = vK + (bb * 4 + ss) * 4
            e(f"    buffer_load_dwordx4 v[{r}:{r+3}], v{5+bb}, s[{sWS}:{sWS+3}], 0 offen offset:{ss*1024} sc1")
    for bb in range(2):
        for ss in range(4):
            r = vV + (bb * 4 + ss) * 2
            e(f"    buffer_load_dwordx2 v[{r}:{r+1}], v{7+bb}, s[{sWS}:{sWS+3}], 0 offen offset:{ss*1024+512} sc1")
    e("    s_waitcnt vmcnt(0)")
    regs = list(range(vK, vK + 32)) + list(range(vV, vV + 16))
    e(f"    v_max3_u32 v9, v{regs[0]}, v{regs[1]}, v{regs[2]}")
    k = 3
    while k < len(regs):
        if k + 1 < len(regs):
            e(f"    v_max3_u32 v9, v9, v{regs[k]}, v{regs[k+1]}")
            k += 2
        else:
            e(f"    v_max_u32 v9, v9, v{regs[k]}")
            k += 1
    e("    v_cmp_eq_u32 s[74:75], -1, v9")
    e("    s_add_u32 s64, s64, 1")
    e("    s_cmp_eq_u64 s[74:75], 0")
    e("    s_cbranch_scc1 L_poll2_done")
    e(f"    s_cmp_ge_u32 s64, {SPIN_MAX}")
    e("    s_cbranch_scc1 L_poll2_done")
    e("    s_sleep 1")
    e("    s_branch L_poll2")
    e("L_poll2_done:")
    for bb in range(2):
        l = [vV + (bb * 4 + ss) * 2 for ss in range(4)]
        m = [x + 1 for x in l]
        e(f"    v_max3_f32 v9, v{m[0]}, v{m[1]}, v{m[2]}")
        e(f"    v_max_f32 v9, v9, v{m[3]}")
        for ss in range(4):
            e(f"    v_sub_f32 v{vT+ss}, v{m[ss]}, v9")
        for ss in range(4):
            e(f"    v_exp_f32 v{vT+ss}, v{vT+ss}")
        e("    s_nop 0")
        e(f"    v_mul_f32 v10, v{vT}, v{l[0]}")
        for ss in range(1, 4):
            e(f"    v_fmac_f32 v10, v{vT+ss}, v{l[ss]}")
        e("    v_rcp_f32 v10, v10")
        for r in range(4):
            e(f"    v_mul_f32 v{vT+4+r}, v{vT}, v{vK+(bb*4)*4+r}")
            for ss in range(1, 4):
                e(f"    v_fmac_f32 v{vT+4+r}, v{vT+ss}, v{vK+(bb*4+ss)*4+r}")
        for r in range(4):
            e(f"    v_mul_f32 v{vT+4+r}, v{vT+4+r}, v10")
        e(f"    v_cvt_pk_bf16_f32 v{vT+8}, v{vT+4}, v{vT+5}")
        e(f"    v_cvt_pk_bf16_f32 v{vT+9}, v{vT+6}, v{vT+7}")
        for p in range(2):
            base = 16 + (bb * 4 + 2 * p) * 2
            e(f"    v_and_b32 v{base}, 0xffff, v{vT+8+p}")
            e(f"    v_lshlrev_b32 v{base+1}, 16, v{vT+8+p}")
            e(f"    v_lshrrev_b32 v{base+2}, 16, v{vT+8+p}")
            e(f"    v_and_b32 v{base+3}, 0xffff0000, v{vT+8+p}")
    for a in range(16):
        e(f"    v_mov_b32 v{vA+a}, 0")
    for r in range(4):
        for bb in range(2):
            lo = 16 + (bb * 4 + r) * 2
            for ee in range(4):
                e(f"    v_dot2c_f32_bf16 v{vA+bb*8+2*ee}, v{vWO+4*r+ee}, v{lo}")
                e(f"    v_dot2c_f32_bf16 v{vA+bb*8+2*ee+1}, v{vWO+4*r+ee}, v{lo+1}")
    e("    s_lshl_b32 s60, s56, 2")
    e("    v_add_u32 v5, s60, v13")
    e("    v_mul_u32_u24 v5, 640, v5")
    e("    v_lshl_add_u32 v5, v14, 5, v5")
    e(f"    ds_write_b128 v5, v[{vA}:{vA+3}] offset:{L_YPART}")
    e(f"    ds_write_b128 v5, v[{vA+4}:{vA+7}] offset:{L_YPART+16}")
    e(f"    ds_write_b128 v5, v[{vA+8}:{vA+11}] offset:{L_YPART+320}")
    e(f"    ds_write_b128 v5, v[{vA+12}:{vA+15}] offset:{L_YPART+336}")
    e("    s_mov_b64 exec, -1")
    e("    s_waitcnt lgkmcnt(0)")
    e("    s_barrier                          ; D")
    e("    s_cmp_ge_u32 s56, 3")
    e("    s_cbranch_scc1 L_end")
    e("    v_lshlrev_b32 v5, 2, v0           ; t*4")
    for half in range(2):
        for p in range(16):
            e(f"    ds_read_b32 v{vK+p}, v5 offset:{L_YPART + (half*16+p)*640}")
        e("    s_waitcnt lgkmcnt(0)")
        if half == 0:
            e(f"    v_add_f32 v6, v{vK}, v{vK+1}")
            rng = range(2, 16)
        else:
            rng = range(0, 16)
        for p in rng:
            e(f"    v_add_f32 v6, v6, v{vK+p}")
    e("    v_cmp_eq_u32 vcc, -1, v6")
    e("    v_mov_b32 v7, 0x7fc00000")
    e("    s_nop 0")
    e("    v_cndmask_b32 v6, v6, v7, vcc")
    e("    s_lshl_b32 s60, s53, 5")
    e("    s_add_u32 s60, s60, s52")
    e("    s_lshl_b32 s60, s60, 10")
    e(f"    s_add_u32 s60, s60, {WS_YP}")
    e("    v_add_u32 v7, s60, v5")
    e("    v_cmp_gt_u32 vcc, 160, v0")
    e("    s_and_saveexec_b64 s[72:73], vcc")
    e("    s_cbranch_execz L_end")
    e(f"    buffer_store_dword v6, v7, s[{sWS}:{sWS+3}], 0 offen sc1")
    e("    s_lshl_b32 s60, s53, 2")
    e("    s_cmp_lg_u32 s60, s52")
    e("    s_cbranch_scc1 L_end")
    e("    v_and_b32 v8, 31, v1")
    e("    v_lshlrev_b32 v8, 2, v8")
    e("    s_mov_b32 s64, 0")
    e("L_poll3a:")
    e(f"    buffer_load_dword v9, v8, s[{sDBG}:{sDBG+3}], 0 offen sc1")
    e("    s_waitcnt vmcnt(0)")
    e("    v_cmp_gt_u32 s[74:75], 8, v9")
    e("    s_add_u32 s64, s64, 1")
    e("    s_cmp_eq_u64 s[74:75], 0")
    e("    s_cbranch_scc1 L_poll3a_done")
    e(f"    s_cmp_ge_u32 s64, {SPIN_MAX}")
    e("    s_cbranch_scc1 L_poll3a_done")
    e("    s_sleep 1")
    e("    s_branch L_poll3a")
    e("L_poll3a_done:")
    e("    s_lshl_b32 s60, s53, 15")
    e(f"    s_add_u32 s60, s60, {WS_YP}")
    e("    v_add_u32 v7, s60, v5")
    for q in range(1, 8):
        e(f"    v_add_u32 v{7+q}, {q*4096}, v7")
    e("    s_mov_b32 s64, 0")
    e("L_poll3:")
    for hh in range(32):
        e(f"    buffer_load_dword v{vK+hh}, v{7+hh//4}, s[{sWS}:{sWS+3}], 0 offen offset:{(hh%4)*1024} sc1")
    e("    s_waitcnt vmcnt(0)")
    e(f"    v_max3_u32 v16, v{vK}, v{vK+1}, v{vK+2}")
    for k in range(3, 31, 2):
        e(f"    v_max3_u32 v16, v16, v{vK+k}, v{vK+k+1}")
    e(f"    v_max_u32 v16, v16, v{vK+31}")
    e("    v_cmp_eq_u32 s[74:75], -1, v16")
    e("    s_add_u32 s64, s64, 1")
    e("    s_cmp_eq_u64 s[74:75], 0")
    e("    s_cbranch_scc1 L_poll3_done")
    e(f"    s_cmp_ge_u32 s64, {SPIN_MAX}")
    e("    s_cbranch_scc1 L_poll3_done")
    e("    s_sleep 1")
    e("    s_branch L_poll3")
    e("L_poll3_done:")
    e(f"    v_add_f32 v6, v{vK}, v{vK+1}")
    for hh in range(2, 32):
        e(f"    v_add_f32 v6, v6, v{vK+hh}")
    e("    v_cvt_pk_bf16_f32 v6, v6, v6")
    e("    v_cmp_le_u32 vcc, 80, v0")
    e("    v_mov_b32 v7, 0")
    e("    v_mov_b32 v8, 560")
    e("    v_cndmask_b32 v7, v7, v8, vcc     ; +560 when t>=80")
    e("    v_add_u32 v7, v7, v0")
    e("    s_mul_i32 s60, s53, 80")
    e("    v_add_u32 v7, s60, v7")
    e("    v_lshlrev_b32 v7, 1, v7")
    e(f"    buffer_store_short v6, v7, s[{sOUT}:{sOUT+3}], 0 offen")
    e("    s_branch L_end")
    e("L_control:")
    for r in range(4):
        e(f"    v_mov_b32 v{16+r}, -1")
    e("    s_lshl_b32 s60, s54, 5")
    e("    s_add_u32 s60, s60, s52")
    e("    s_lshl_b32 s60, s60, 2")
    e("    s_add_u32 s60, s60, s55")
    e("    s_lshl_b32 s60, s60, 10")
    e(f"    s_add_u32 s60, s60, {WS_OP}")
    e("    v_lshlrev_b32 v5, 4, v1")
    e("    v_add_u32 v6, s60, v5")
    e(f"    buffer_store_dwordx4 v[16:19], v6, s[{sWS}:{sWS+3}], 0 offen sc1")
    e("    s_lshl_b32 s60, s53, 5")
    e("    s_add_u32 s60, s60, s52")
    e("    s_lshl_b32 s60, s60, 10")
    e(f"    s_add_u32 s60, s60, {WS_YP}")
    e("    v_add_u32 v7, s60, v5")
    e(f"    buffer_store_dwordx4 v[16:19], v7, s[{sWS}:{sWS+3}], 0 offen sc1")
    e("    s_barrier                          ; A")
    for grp in range(4):
        for p in range(8):
            e(f"    ds_read_b128 v[{vK+4*p}:{vK+4*p+3}], v5 offset:{L_QPART + (grp*8+p)*1024}")
        e("    s_waitcnt lgkmcnt(0)")
        for p in range(8):
            for ee in range(4):
                if grp == 0 and p == 0:
                    e(f"    v_mov_b32 v{20+ee}, v{vK+ee}")
                else:
                    e(f"    v_add_f32 v{20+ee}, v{20+ee}, v{vK+4*p+ee}")
    e("    s_lshl_b32 s60, s52, 3")
    e("    s_add_u32 s60, s60, s53")
    e("    s_lshl_b32 s60, s60, 10")
    e("    v_add_u32 v6, s60, v5")
    e(f"    buffer_store_dwordx4 v[20:23], v6, s[{sWS}:{sWS+3}], 0 offen sc1")
    e("    s_waitcnt vmcnt(0)")
    e("    s_lshl_b32 s60, s52, 2")
    e("    v_mov_b32 v8, s60")
    e("    v_mov_b32 v9, 1")
    e("    s_mov_b64 exec, 1")
    e(f"    buffer_atomic_add v9, v8, s[{sDBG}:{sDBG+3}], 0 offen sc1")
    e("    s_mov_b64 exec, -1")
    e("    s_mov_b32 s64, 0")
    e("L_poll1:")
    e(f"    buffer_load_dword v10, v8, s[{sDBG}:{sDBG+3}], 0 offen sc1")
    e("    s_waitcnt vmcnt(0)")
    e("    v_readfirstlane_b32 s61, v10")
    e("    s_add_u32 s64, s64, 1")
    e("    s_cmp_ge_u32 s61, 8")
    e("    s_cbranch_scc1 L_poll1_done")
    e(f"    s_cmp_ge_u32 s64, {SPIN_MAX}")
    e("    s_cbranch_scc1 L_poll1_done")
    e("    s_sleep 1")
    e("    s_branch L_poll1")
    e("L_poll1_done:")
    e("    s_lshl_b32 s60, s52, 13")
    e("    s_lshl_b32 s61, s54, 9")
    e("    s_add_u32 s60, s60, s61")
    e("    v_lshlrev_b32 v6, 3, v1")
    e("    v_add_u32 v6, s60, v6")
    e("    v_add_u32 v7, 0x1000, v6")
    for jj in range(8):
        e(f"    buffer_load_dwordx2 v[{vK+2*jj}:{vK+2*jj+1}], v{6 + jj//4}, s[{sWS}:{sWS+3}], 0 offen offset:{(jj%4)*1024} sc1")
    e("    s_waitcnt vmcnt(0)")
    e(f"    v_add_f32 v20, v{vK}, v{vK+2}")
    e(f"    v_add_f32 v21, v{vK+1}, v{vK+3}")
    for jj in range(2, 8):
        e(f"    v_add_f32 v20, v20, v{vK+2*jj}")
        e(f"    v_add_f32 v21, v21, v{vK+2*jj+1}")
    e("    v_cvt_pk_bf16_f32 v20, v20, v21")
    e("    v_lshlrev_b32 v6, 2, v1")
    e(f"    ds_write_b32 v6, v20 offset:{L_QBF}")
    e("    s_waitcnt lgkmcnt(0)")
    e("    s_barrier                          ; B")
    e("L_end:")
    e("    s_endpgm")
    e('.section .rodata,"a"')
    e(".p2align 6")
    e(f".amdhsa_kernel {NAME}")
    e(f"  .amdhsa_next_free_vgpr {NVGPR}")
    e("  .amdhsa_next_free_sgpr 96")
    e(f"  .amdhsa_accum_offset {NVGPR}")
    e("  .amdhsa_group_segment_fixed_size 0")
    e("  .amdhsa_kernarg_size 64")
    e("  .amdhsa_user_sgpr_count 2")
    e("  .amdhsa_user_sgpr_kernarg_segment_ptr 1")
    e("  .amdhsa_system_sgpr_workgroup_id_x 1")
    e(".end_amdhsa_kernel")

gen()
path = sys.argv[1] if len(sys.argv) > 1 else "standalone__sliding_block_cached__decode.s"
open(path, "w").write("\n".join(out) + "\n")
print("wrote", path, len(out), "lines")
```

```python
import sys, os, struct

K1 = "qproj_kernel"
K2 = "attn_kernel"
WS_QP = 0
WS_OP = 256 * 1024
WS_YP = 512 * 1024
WS_BYTES = 768 * 1024

L_QBF = 0
L_WMAX = 256
L_OFIN = 512
L_OPART = 2560
OPART_STRIDE = 528
L_YPART = 19456
LDS2 = 19456 + 20480 + 256
LDS1 = 16 * 1024

SPIN_MAX = 200000
STAMPS = int(os.environ.get("STAMPS", "0"))
NT_KV = os.environ.get("NT_KV", "nt")
NT_WQ = os.environ.get("NT_WQ", "nt")
NT_WO = os.environ.get("NT_WO", "nt")
if STAMPS:
    WS_BYTES = 2 * 1024 * 1024

out = []
def e(s=""):
    out.append(s)

sK, sV, sWQ, sWO, sX, sWS, sOUT, sDBG = 20, 24, 28, 32, 36, 40, 44, 48

def stamp(k):
    if STAMPS:
        e(f"    s_memrealtime s[{76+2*k}:{77+2*k}]")
def dump_stamps(ks):
    if not STAMPS:
        return
    e("    s_waitcnt lgkmcnt(0)")
    e("    s_mov_b64 exec, 1")
    e("    s_lshl_b32 s60, s2, 7")
    e("    s_add_u32 s60, s60, 0x100000")
    e("    v_mov_b32 v5, s60")
    for k in ks:
        e(f"    v_mov_b32 v6, s{76+2*k}")
        e(f"    v_mov_b32 v7, s{77+2*k}")
        e(f"    buffer_store_dwordx2 v[6:7], v5, s[{sWS}:{sWS+3}], 0 offen offset:{8*k}")
        e("    s_nop 1")

def srd(d, p, nbytes):
    e(f"    s_mov_b32 s{d}, s{p}")
    e(f"    s_and_b32 s{d+1}, s{p+1}, 0xffff")
    e(f"    s_mov_b32 s{d+2}, {nbytes:#x}")
    e(f"    s_mov_b32 s{d+3}, 0x00020000")

def prologue(name, endlbl):
    e(f".globl {name}")
    e(".p2align 8")
    e(f".type {name},@function")
    e(f"{name}:")
    e("    s_cmp_ge_u32 s2, 256")
    e(f"    s_cbranch_scc1 {endlbl}")
    e("    s_load_dwordx16 s[4:19], s[0:1], 0")
    e("    v_and_b32 v1, 63, v0              ; lane")
    e("    v_lshrrev_b32 v2, 6, v0")
    e("    s_and_b32 s3, s2, 7")
    e("    v_readfirstlane_b32 s59, v2")
    e("    s_lshr_b32 s57, s2, 3")
    e("    s_lshr_b32 s58, s57, 3")
    e("    s_lshl_b32 s52, s3, 2")
    e("    s_add_u32 s52, s52, s58           ; h")
    e("    s_and_b32 s53, s57, 7             ; j")
    e("    s_lshr_b32 s54, s53, 2            ; b")
    e("    s_and_b32 s55, s53, 3             ; s")
    e("    v_lshrrev_b32 v3, 4, v1           ; g = lane/16")
    e("    v_and_b32 v4, 15, v1              ; c16")
    e("    s_waitcnt lgkmcnt(0)")

def kd(name, nv):
    e(f".amdhsa_kernel {name}")
    e(f"  .amdhsa_next_free_vgpr {nv}")
    e("  .amdhsa_next_free_sgpr 102")
    e(f"  .amdhsa_accum_offset {nv}")
    e("  .amdhsa_group_segment_fixed_size 0")
    e("  .amdhsa_kernarg_size 64")
    e("  .amdhsa_user_sgpr_count 2")
    e("  .amdhsa_user_sgpr_kernarg_segment_ptr 1")
    e("  .amdhsa_system_sgpr_workgroup_id_x 1")
    e(".end_amdhsa_kernel")

def gen_k1():
    prologue(K1, "L1_end")
    srd(sX, 4, 2 * 640 * 2)
    srd(sWQ, 10, 640 * 4096 * 2)
    srd(sWS, 18, WS_BYTES)
    e("    s_mul_i32 s60, s53, 80")
    e("    s_mul_i32 s61, s59, 20")
    e("    s_add_u32 s60, s60, s61")
    e("    v_mul_u32_u24 v5, 5, v3")
    e("    v_add_u32 v5, s60, v5             ; row_0")
    e("    v_lshlrev_b32 v6, 13, v5")
    e("    v_lshl_add_u32 v6, v4, 4, v6")
    e("    s_lshl_b32 s62, s52, 8")
    e("    v_add_u32 v6, s62, v6")
    for i in range(5):
        e(f"    s_mov_b32 s63, {i*8192}")
        e(f"    buffer_load_dwordx4 v[{16+4*i}:{19+4*i}], v6, s[{sWQ}:{sWQ+3}], s63 offen {NT_WQ}")
    e("    v_lshlrev_b32 v9, 1, v5")
    for i in range(5):
        for bb in range(2):
            e(f"    buffer_load_ushort v{40+2*i+bb}, v9, s[{sX}:{sX+3}], 0 offen offset:{2*i+1280*bb}")
    e("    s_cmp_ge_u32 s59, 2")
    e("    s_cbranch_scc1 L1_noclear")
    for r in range(4):
        e(f"    v_mov_b32 v{70+r}, -1")
    e("    s_lshl_b32 s60, s54, 5")
    e("    s_add_u32 s60, s60, s52")
    e("    s_lshl_b32 s60, s60, 2")
    e("    s_add_u32 s60, s60, s55")
    e("    s_lshl_b32 s60, s60, 10")
    e(f"    s_add_u32 s60, s60, {WS_OP}")
    e("    s_lshl_b32 s61, s53, 5")
    e("    s_add_u32 s61, s61, s52")
    e("    s_lshl_b32 s61, s61, 10")
    e(f"    s_add_u32 s61, s61, {WS_YP}")
    e("    s_cmp_eq_u32 s59, 0")
    e("    s_cselect_b32 s60, s60, s61")
    e("    v_lshl_add_u32 v8, v1, 4, s60")
    e(f"    buffer_store_dwordx4 v[70:73], v8, s[{sWS}:{sWS+3}], 0 offen")
    e("L1_noclear:")
    for a in range(16):
        e(f"    v_mov_b32 v{52+a}, 0")
    e("    s_waitcnt vmcnt(0)")
    for i in range(5):
        for bb in range(2):
            e(f"    v_lshlrev_b32 v{76+bb}, 16, v{40+2*i+bb}")
        for bb in range(2):
            for ee in range(4):
                e(f"    v_dot2c_f32_bf16 v{52+bb*8+2*ee}, v{16+4*i+ee}, v{40+2*i+bb}")
                e(f"    v_dot2c_f32_bf16 v{52+bb*8+2*ee+1}, v{16+4*i+ee}, v{76+bb}")
    e("    s_lshl_b32 s60, s59, 12")
    e("    v_lshlrev_b32 v5, 10, v3")
    e("    v_lshl_add_u32 v5, v4, 5, v5")
    e("    v_add_u32 v5, s60, v5")
    e("    ds_write_b128 v5, v[52:55]")
    e("    ds_write_b128 v5, v[56:59] offset:16")
    e("    ds_write_b128 v5, v[60:63] offset:512")
    e("    ds_write_b128 v5, v[64:67] offset:528")
    e("    s_waitcnt lgkmcnt(0)")
    e("    s_barrier")
    e("    v_lshlrev_b32 v5, 2, v0")
    for p in range(16):
        e(f"    ds_read_b32 v{16+p}, v5 offset:{p*1024}")
    e("    s_waitcnt lgkmcnt(0)")
    for st in (8, 4, 2, 1):
        for p in range(st):
            e(f"    v_add_f32 v{16+p}, v{16+p}, v{16+p+st}")
    e("    s_lshl_b32 s60, s52, 3")
    e("    s_add_u32 s60, s60, s53")
    e("    s_lshl_b32 s60, s60, 10")
    e("    v_add_u32 v5, s60, v5")
    e(f"    buffer_store_dword v16, v5, s[{sWS}:{sWS+3}], 0 offen")
    e("L1_end:")
    e("    s_endpgm")

vK = 16; vV = 48; vWO = 80; vA = 96; vS = 112; vQ = 120; vT = 124
NV2 = 128

def gen_k2():
    prologue(K2, "L_end")
    srd(sK, 6, 2 * 32 * 4096 * 128 * 2)
    srd(sV, 8, 2 * 32 * 4096 * 128 * 2)
    srd(sWO, 12, 4096 * 640 * 2)
    srd(sOUT, 14, 2 * 640 * 2)
    srd(sWS, 18, WS_BYTES)
    stamp(0)
    e("    s_cmp_lg_u32 s59, 0")
    e("    s_cbranch_scc1 L_noq")
    e("    s_lshl_b32 s60, s52, 13")
    e("    s_lshl_b32 s61, s54, 9")
    e("    s_add_u32 s60, s60, s61")
    e("    v_lshlrev_b32 v6, 3, v1")
    e("    v_add_u32 v6, s60, v6")
    e("    v_add_u32 v7, 0x1000, v6")
    for jj in range(8):
        e(f"    buffer_load_dwordx2 v[{vA+2*jj}:{vA+2*jj+1}], v{6 + jj//4}, s[{sWS}:{sWS+3}], 0 offen offset:{(jj%4)*1024}")
    e("L_noq:")
    e("    s_lshl_b32 s65, s54, 25")
    e("    s_lshl_b32 s66, s52, 20")
    e("    s_add_u32 s65, s65, s66")
    e("    s_lshl_b32 s66, s55, 16")
    e("    s_add_u32 s65, s65, s66")
    e("    s_add_u32 s65, s65, 0xc0000")
    e("    s_lshl_b32 s66, s59, 13")
    e("    s_add_u32 s65, s65, s66")
    e("    v_lshlrev_b32 v11, 4, v1")
    e("    v_add_u32 v11, s65, v11")
    e("    v_add_u32 v12, 0x1000, v11")
    for i in range(8):
        vo = 11 if i < 4 else 12
        e(f"    buffer_load_dwordx4 v[{vK+4*i}:{vK+4*i+3}], v{vo}, s[{sK}:{sK+3}], 0 offen offset:{(i%4)*1024} {NT_KV}")
    e("    v_mul_u32_u24 v13, 205, v1")
    e("    v_lshrrev_b32 v13, 11, v13        ; rg")
    e("    v_mul_u32_u24 v14, 10, v13")
    e("    v_sub_u32 v14, v1, v14            ; ch")
    e("    s_lshl_b32 s67, s52, 7")
    e("    s_lshl_b32 s68, s59, 4")
    e("    s_add_u32 s67, s67, s68           ; h*128 + 16w")
    e("    v_lshl_add_u32 v15, v13, 2, s67   ; row (i=0)")
    e("    v_mul_u32_u24 v15, 1280, v15")
    e("    v_lshl_add_u32 v15, v14, 4, v15")
    e("    s_mul_i32 s68, s53, 160")
    e("    v_add_u32 v15, s68, v15")
    e("    s_mov_b32 s70, -1")
    e("    s_mov_b32 s71, 0xff               ; lanes < 40")
    e("    s_barrier")
    for i in range(8):
        vo = 11 if i < 4 else 12
        e(f"    buffer_load_dwordx4 v[{vV+4*i}:{vV+4*i+3}], v{vo}, s[{sV}:{sV+3}], 0 offen offset:{(i%4)*1024} {NT_KV}")
    e("    s_mov_b64 exec, s[70:71]")
    for i in range(4):
        e(f"    buffer_load_dwordx4 v[{vWO+4*i}:{vWO+4*i+3}], v15, s[{sWO}:{sWO+3}], 0 offen offset:{i*1280} {NT_WO}")
    e("    s_mov_b64 exec, -1")
    e("    s_cmp_lg_u32 s59, 0")
    e("    s_cbranch_scc1 L_noq2")
    e("    s_waitcnt vmcnt(20)")
    for st in (4, 2, 1):
        for p in range(st):
            e(f"    v_add_f32 v{vA+2*p}, v{vA+2*p}, v{vA+2*(p+st)}")
            e(f"    v_add_f32 v{vA+2*p+1}, v{vA+2*p+1}, v{vA+2*(p+st)+1}")
    e(f"    v_cvt_pk_bf16_f32 v6, v{vA}, v{vA+1}")
    e("    v_lshlrev_b32 v5, 2, v1")
    e(f"    ds_write_b32 v5, v6 offset:{L_QBF}")
    e("    s_waitcnt lgkmcnt(0)")
    e("L_noq2:")
    e("    s_barrier                          ; B (q ready)")
    stamp(3)
    e("    v_lshlrev_b32 v5, 4, v4")
    e(f"    ds_read_b128 v[{vQ}:{vQ+3}], v5 offset:{L_QBF}")
    for i in range(8):
        e(f"    v_mov_b32 v{vS+i}, 0")
    e("    s_waitcnt lgkmcnt(0)")
    for i in range(8):
        e(f"    s_waitcnt vmcnt({19-i})")
        for ee in range(4):
            e(f"    v_dot2c_f32_bf16 v{vS+i}, v{vK+4*i+ee}, v{vQ+ee}")
    e("    s_nop 2")
    for sh in (8, 4, 2, 1):
        for i in range(8):
            e(f"    v_add_f32_dpp v{vS+i}, v{vS+i}, v{vS+i} row_ror:{sh} row_mask:0xf bank_mask:0xf")
    c = (128 ** -0.5) * 1.4426950408889634
    cbits = struct.unpack("<I", struct.pack("<f", c))[0]
    e(f"    s_mov_b32 s60, {cbits:#x}")
    for i in range(8):
        e(f"    v_mul_f32 v{vS+i}, s60, v{vS+i}")
    e(f"    v_max3_f32 v6, v{vS}, v{vS+1}, v{vS+2}")
    e(f"    v_max3_f32 v7, v{vS+3}, v{vS+4}, v{vS+5}")
    e(f"    v_max3_f32 v6, v6, v{vS+6}, v{vS+7}")
    e("    v_max_f32 v6, v6, v7")
    e("    s_nop 1")
    e("    v_readlane_b32 s60, v6, 0")
    e("    v_readlane_b32 s61, v6, 16")
    e("    v_readlane_b32 s62, v6, 32")
    e("    v_readlane_b32 s63, v6, 48")
    e("    s_nop 1")
    e("    v_mov_b32 v7, s60")
    e("    v_max_f32 v7, s61, v7")
    e("    v_max_f32 v7, s62, v7")
    e("    v_max_f32 v7, s63, v7")
    e("    s_lshl_b32 s60, s59, 2")
    e("    v_mov_b32 v5, s60")
    e(f"    ds_write_b32 v5, v7 offset:{L_WMAX}")
    e("    s_waitcnt lgkmcnt(0)")
    stamp(4)
    e("    s_barrier                          ; M")
    e("    v_mov_b32 v5, 0")
    e(f"    ds_read_b128 v[{vK}:{vK+3}], v5 offset:{L_WMAX}")
    e(f"    ds_read_b128 v[{vK+4}:{vK+7}], v5 offset:{L_WMAX+16}")
    e("    s_waitcnt lgkmcnt(0)")
    e(f"    v_max3_f32 v10, v{vK}, v{vK+1}, v{vK+2}")
    e(f"    v_max3_f32 v6, v{vK+3}, v{vK+4}, v{vK+5}")
    e(f"    v_max3_f32 v10, v10, v{vK+6}, v{vK+7}")
    e("    v_max_f32 v10, v10, v6")
    for i in range(8):
        e(f"    v_sub_f32 v{vS+i}, v{vS+i}, v10")
    for i in range(8):
        e(f"    v_exp_f32 v{vS+i}, v{vS+i}")
    e("    s_nop 0")
    for i in range(0, 8, 2):
        e(f"    v_cvt_pk_bf16_f32 v{vK+16+i//2}, v{vS+i}, v{vS+i+1}")
    vP = vK
    for i in range(0, 8, 2):
        P = vK + 16 + i // 2
        e(f"    v_and_b32 v{vP+2*i}, 0xffff, v{P}")
        e(f"    v_lshlrev_b32 v{vP+2*i+1}, 16, v{P}")
        e(f"    v_lshrrev_b32 v{vP+2*i+2}, 16, v{P}")
        e(f"    v_and_b32 v{vP+2*i+3}, 0xffff0000, v{P}")
    e(f"    v_add_f32 v6, v{vP+1}, v{vP+3}")
    e(f"    v_add_f32 v7, v{vP+5}, v{vP+7}")
    e(f"    v_add_f32 v8, v{vP+9}, v{vP+11}")
    e(f"    v_add_f32 v9, v{vP+13}, v{vP+15}")
    e("    v_add_f32 v6, v6, v7")
    e("    v_add_f32 v8, v8, v9")
    e("    v_add_f32 v9, v6, v8")
    for a in range(8):
        e(f"    v_mov_b32 v{vA+a}, 0")
    for i in range(8):
        e(f"    s_waitcnt vmcnt({11-i})")
        for ee in range(4):
            e(f"    v_dot2c_f32_bf16 v{vA+2*ee}, v{vV+4*i+ee}, v{vP+2*i}")
            e(f"    v_dot2c_f32_bf16 v{vA+2*ee+1}, v{vV+4*i+ee}, v{vP+2*i+1}")
    e("    s_lshl_b32 s60, s59, 2")
    e("    v_add_u32 v5, s60, v3             ; part")
    e(f"    v_mul_u32_u24 v5, {OPART_STRIDE}, v5")
    e("    v_lshl_add_u32 v6, v4, 5, v5")
    e(f"    ds_write_b128 v6, v[{vA}:{vA+3}] offset:{L_OPART}")
    e(f"    ds_write_b128 v6, v[{vA+4}:{vA+7}] offset:{L_OPART+16}")
    e(f"    ds_write_b32 v5, v9 offset:{L_OPART+512}")
    e("    s_waitcnt lgkmcnt(0)")
    stamp(5)
    e("    s_barrier                          ; C")
    e("    s_cmp_eq_u32 s59, 3")
    e("    s_cbranch_scc1 L_poller")
    e("    s_cmp_ge_u32 s59, 3")
    e("    s_cbranch_scc1 L_wait_o")
    e("    v_lshlrev_b32 v5, 2, v0           ; t*4")
    for p in range(32):
        e(f"    ds_read_b32 v{vK+p}, v5 offset:{L_OPART + p*OPART_STRIDE}")
    e("    s_waitcnt lgkmcnt(0)")
    for st in (16, 8, 4, 2, 1):
        for p in range(st):
            e(f"    v_add_f32 v{vK+p}, v{vK+p}, v{vK+p+st}")
    e("    v_cmp_eq_u32 vcc, 129, v0")
    e("    s_nop 1")
    e(f"    v_cndmask_b32 v6, v{vK}, v10, vcc")
    e("    v_cmp_eq_u32 vcc, -1, v6")
    e("    v_mov_b32 v7, 0x7fc00000")
    e("    s_nop 0")
    e("    v_cndmask_b32 v6, v6, v7, vcc")
    e("    s_lshl_b32 s60, s54, 5")
    e("    s_add_u32 s60, s60, s52")
    e("    s_lshl_b32 s60, s60, 2")
    e("    s_add_u32 s60, s60, s55")
    e("    s_lshl_b32 s60, s60, 10")
    e(f"    s_add_u32 s60, s60, {WS_OP}")
    e("    v_add_u32 v5, s60, v5")
    e("    v_cmp_gt_u32 vcc, 130, v0")
    e("    s_and_saveexec_b64 s[72:73], vcc")
    e(f"    buffer_store_dword v6, v5, s[{sWS}:{sWS+3}], 0 offen sc1")
    e("    s_mov_b64 exec, s[72:73]")
    stamp(6)
    e("    s_branch L_wait_o")
    e("L_poller:")
    e("    s_lshl_b32 s60, s52, 12           ; h*4096")
    e(f"    s_add_u32 s60, s60, {WS_OP}")
    e("    v_and_b32 v5, 31, v1")
    e("    v_lshl_add_u32 v5, v5, 4, s60")
    e("    v_lshrrev_b32 v6, 5, v1")
    e("    v_lshlrev_b32 v6, 17, v6")
    e("    v_add_u32 v5, v5, v6")
    e("    v_add_u32 v6, s60, v6")
    e("    s_mov_b32 s64, 0")
    e("L_poll2:")
    for ss in range(4):
        e(f"    buffer_load_dwordx4 v[{vK+4*ss}:{vK+4*ss+3}], v5, s[{sWS}:{sWS+3}], 0 offen offset:{ss*1024} sc1")
    for ss in range(4):
        e(f"    buffer_load_dwordx2 v[{vK+16+2*ss}:{vK+17+2*ss}], v6, s[{sWS}:{sWS+3}], 0 offen offset:{ss*1024+512} sc1")
    e("    s_waitcnt vmcnt(0)")
    e(f"    v_max3_u32 v9, v{vK}, v{vK+1}, v{vK+2}")
    for k in range(3, 23, 2):
        e(f"    v_max3_u32 v9, v9, v{vK+k}, v{vK+k+1}")
    e(f"    v_max_u32 v9, v9, v{vK+23}")
    e("    v_cmp_eq_u32 s[74:75], -1, v9")
    e("    s_add_u32 s64, s64, 1")
    e("    s_cmp_eq_u64 s[74:75], 0")
    e("    s_cbranch_scc1 L_poll2_done")
    e(f"    s_cmp_ge_u32 s64, {SPIN_MAX}")
    e("    s_cbranch_scc1 L_poll2_done")
    e("    s_sleep 1")
    e("    s_branch L_poll2")
    e("L_poll2_done:")
    l = [vK + 16 + 2 * ss for ss in range(4)]
    m = [x + 1 for x in l]
    T = vV
    e(f"    v_max3_f32 v9, v{m[0]}, v{m[1]}, v{m[2]}")
    e(f"    v_max_f32 v9, v9, v{m[3]}")
    for ss in range(4):
        e(f"    v_sub_f32 v{T+ss}, v{m[ss]}, v9")
    for ss in range(4):
        e(f"    v_exp_f32 v{T+ss}, v{T+ss}")
    e("    s_nop 0")
    e(f"    v_mul_f32 v9, v{T}, v{l[0]}")
    for ss in range(1, 4):
        e(f"    v_fmac_f32 v9, v{T+ss}, v{l[ss]}")
    e("    v_rcp_f32 v9, v9")
    for r in range(4):
        e(f"    v_mul_f32 v{T+4+r}, v{T}, v{vK+r}")
        for ss in range(1, 4):
            e(f"    v_fmac_f32 v{T+4+r}, v{T+ss}, v{vK+4*ss+r}")
    for r in range(4):
        e(f"    v_mul_f32 v{T+4+r}, v{T+4+r}, v9")
    e(f"    v_cvt_pk_bf16_f32 v{T+8}, v{T+4}, v{T+5}")
    e(f"    v_cvt_pk_bf16_f32 v{T+9}, v{T+6}, v{T+7}")
    for p in range(2):
        base = T + 12 + 4 * p
        e(f"    v_and_b32 v{base}, 0xffff, v{T+8+p}")
        e(f"    v_lshlrev_b32 v{base+1}, 16, v{T+8+p}")
        e(f"    v_lshrrev_b32 v{base+2}, 16, v{T+8+p}")
        e(f"    v_and_b32 v{base+3}, 0xffff0000, v{T+8+p}")
    e("    v_lshlrev_b32 v5, 5, v1")
    e(f"    ds_write_b128 v5, v[{T+12}:{T+15}] offset:{L_OFIN}")
    e(f"    ds_write_b128 v5, v[{T+16}:{T+19}] offset:{L_OFIN+16}")
    e("    s_waitcnt lgkmcnt(0)")
    e("L_wait_o:")
    e("    s_barrier")
    stamp(7)
    e("    s_lshl_b32 s60, s59, 7            ; 16w*8")
    e("    v_lshl_add_u32 v5, v13, 5, s60")
    e("    s_mov_b64 exec, s[70:71]")
    e(f"    ds_read_b128 v[{vK}:{vK+3}], v5 offset:{L_OFIN}")
    e(f"    ds_read_b128 v[{vK+4}:{vK+7}], v5 offset:{L_OFIN+16}")
    e(f"    ds_read_b128 v[{vK+8}:{vK+11}], v5 offset:{L_OFIN+1024}")
    e(f"    ds_read_b128 v[{vK+12}:{vK+15}], v5 offset:{L_OFIN+1040}")
    for a in range(16):
        e(f"    v_mov_b32 v{vA+a}, 0")
    e("    s_waitcnt vmcnt(0) lgkmcnt(0)")
    for r in range(4):
        for bb in range(2):
            lo = vK + bb * 8 + r * 2
            for ee in range(4):
                e(f"    v_dot2c_f32_bf16 v{vA+bb*8+2*ee}, v{vWO+4*r+ee}, v{lo}")
                e(f"    v_dot2c_f32_bf16 v{vA+bb*8+2*ee+1}, v{vWO+4*r+ee}, v{lo+1}")
    e("    s_lshl_b32 s60, s59, 2")
    e("    v_add_u32 v5, s60, v13")
    e("    v_mul_u32_u24 v5, 640, v5")
    e("    v_lshl_add_u32 v5, v14, 5, v5")
    e(f"    ds_write_b128 v5, v[{vA}:{vA+3}] offset:{L_YPART}")
    e(f"    ds_write_b128 v5, v[{vA+4}:{vA+7}] offset:{L_YPART+16}")
    e(f"    ds_write_b128 v5, v[{vA+8}:{vA+11}] offset:{L_YPART+320}")
    e(f"    ds_write_b128 v5, v[{vA+12}:{vA+15}] offset:{L_YPART+336}")
    e("    s_mov_b64 exec, -1")
    e("    s_waitcnt lgkmcnt(0)")
    e("    s_barrier                          ; D")
    e("    s_cmp_ge_u32 s59, 3")
    e("    s_cbranch_scc1 L_end")
    e("    v_lshlrev_b32 v5, 2, v0           ; t*4")
    for p in range(32):
        e(f"    ds_read_b32 v{vK+p}, v5 offset:{L_YPART + p*640}")
    e("    s_waitcnt lgkmcnt(0)")
    for st in (16, 8, 4, 2, 1):
        for p in range(st):
            e(f"    v_add_f32 v{vK+p}, v{vK+p}, v{vK+p+st}")
    e(f"    v_cmp_eq_u32 vcc, -1, v{vK}")
    e("    v_mov_b32 v7, 0x7fc00000")
    e("    s_nop 0")
    e(f"    v_cndmask_b32 v6, v{vK}, v7, vcc")
    e("    s_lshl_b32 s60, s53, 5")
    e("    s_add_u32 s60, s60, s52")
    e("    s_lshl_b32 s60, s60, 10")
    e(f"    s_add_u32 s60, s60, {WS_YP}")
    e("    v_add_u32 v7, s60, v5")
    e("    v_cmp_gt_u32 vcc, 160, v0")
    e("    s_and_saveexec_b64 s[72:73], vcc")
    e("    s_cbranch_execz L_end")
    e(f"    buffer_store_dword v6, v7, s[{sWS}:{sWS+3}], 0 offen sc1")
    stamp(8)
    e("    s_lshl_b32 s60, s53, 2")
    e("    s_cmp_lg_u32 s60, s52")
    e("    s_cbranch_scc1 L_dump0" if STAMPS else "    s_cbranch_scc1 L_end")
    e("    s_lshl_b32 s60, s53, 15")
    e(f"    s_add_u32 s60, s60, {WS_YP}")
    e("    v_add_u32 v7, s60, v5")
    for q in range(1, 8):
        e(f"    v_add_u32 v{7+q}, {q*4096}, v7")
    e("    s_mov_b32 s64, 0")
    e("L_poll3:")
    for hh in range(32):
        e(f"    buffer_load_dword v{vK+hh}, v{7+hh//4}, s[{sWS}:{sWS+3}], 0 offen offset:{(hh%4)*1024} sc1")
    e("    s_waitcnt vmcnt(0)")
    e(f"    v_max3_u32 v6, v{vK}, v{vK+1}, v{vK+2}")
    for k in range(3, 31, 2):
        e(f"    v_max3_u32 v6, v6, v{vK+k}, v{vK+k+1}")
    e(f"    v_max_u32 v6, v6, v{vK+31}")
    e("    v_cmp_eq_u32 s[74:75], -1, v6")
    e("    s_add_u32 s64, s64, 1")
    e("    s_cmp_eq_u64 s[74:75], 0")
    e("    s_cbranch_scc1 L_poll3_done")
    e(f"    s_cmp_ge_u32 s64, {SPIN_MAX}")
    e("    s_cbranch_scc1 L_poll3_done")
    e("    s_sleep 1")
    e("    s_branch L_poll3")
    e("L_poll3_done:")
    for st in (16, 8, 4, 2, 1):
        for p in range(st):
            e(f"    v_add_f32 v{vK+p}, v{vK+p}, v{vK+p+st}")
    e(f"    v_cvt_pk_bf16_f32 v6, v{vK}, v{vK}")
    e("    v_cmp_le_u32 vcc, 80, v0")
    e("    v_mov_b32 v7, 0")
    e("    v_mov_b32 v8, 560")
    e("    v_cndmask_b32 v7, v7, v8, vcc     ; +560 when t>=80")
    e("    v_add_u32 v7, v7, v0")
    e("    s_mul_i32 s60, s53, 80")
    e("    v_add_u32 v7, s60, v7")
    e("    v_lshlrev_b32 v7, 1, v7")
    e(f"    buffer_store_short v6, v7, s[{sOUT}:{sOUT+3}], 0 offen")
    stamp(9)
    if STAMPS:
        e("L_dump0:")
        e("    s_cmp_lg_u32 s59, 0")
        e("    s_cbranch_scc1 L_end")
        dump_stamps([0,3,4,5,6,7,8,9])
    e("L_end:")
    e("    s_endpgm")

e(f"; @launch kernel={K1} grid=(256,1,1) block=(256,1,1) lds={LDS1}")
e(f"; @launch kernel={K2} grid=(256,1,1) block=(512,1,1) lds={LDS2}")
e('.amdgcn_target "amdgcn-amd-amdhsa--gfx950"')
e(".text")
gen_k1()
gen_k2()
e('.section .rodata,"a"')
e(".p2align 6")
kd(K1, 80)
e(".p2align 6")
kd(K2, NV2)
path = sys.argv[1] if len(sys.argv) > 1 else "standalone__sliding_block_cached__decode.s"
open(path, "w").write("\n".join(out) + "\n")
print("wrote", path, len(out), "lines")
```

```python
import sys

NAME = "standalone__sliding_block_cached__decode_kernel"

WS_QP = 0
WS_OP = 256 * 1024
WS_YP = 512 * 1024
WS_BYTES = 768 * 1024

L_QPART = 0
L_QBF = 32768
L_WMAX = 33024
L_OPART = 0
OPART_STRIDE = 528
L_YPART = 33280
LDS_BYTES = 33280 + 20480 + 256

SPIN_MAX = 400000
import os
STAMPS = int(os.environ.get("STAMPS", "0"))
if STAMPS:
    WS_BYTES = 2 * 1024 * 1024
def stamp(k):
    if STAMPS:
        e(f"    s_memrealtime s[{76+2*k}:{77+2*k}]")
def dump_stamps(ks):
    if not STAMPS:
        return
    e("    s_waitcnt lgkmcnt(0)")
    e("    s_mov_b64 exec, 1")
    e("    s_lshl_b32 s60, s2, 7")
    e("    s_add_u32 s60, s60, 0x100000")
    e("    v_mov_b32 v5, s60")
    for k in ks:
        e(f"    v_mov_b32 v6, s{76+2*k}")
        e(f"    v_mov_b32 v7, s{77+2*k}")
        e(f"    buffer_store_dwordx2 v[6:7], v5, s[{sWS}:{sWS+3}], 0 offen offset:{8*k}")
        e("    s_nop 1")

out = []
def e(s=""):
    out.append(s)

def header():
    e("; Fused decode attention: q-proj -> sliding window attention (flash-decoding split) -> out-proj")
    e(f"; @launch grid=(256,1,1) block=(576,1,1) lds={LDS_BYTES}")
    e('.amdgcn_target "amdgcn-amd-amdhsa--gfx950"')
    e(".text")
    e(f".globl {NAME}")
    e(".p2align 8")
    e(f".type {NAME},@function")
    e(f"{NAME}:")

def srd(d, p, nbytes):
    e(f"    s_mov_b32 s{d}, s{p}")
    e(f"    s_and_b32 s{d+1}, s{p+1}, 0xffff")
    e(f"    s_mov_b32 s{d+2}, {nbytes:#x}")
    e(f"    s_mov_b32 s{d+3}, 0x00020000")

sK, sV, sWQ, sWO, sX, sWS, sOUT, sDBG = 20, 24, 28, 32, 36, 40, 44, 48
sH, sJ, sB, sS, sW = 52, 53, 54, 55, 56

vWQ = 16
vX = 28
vK = 36
vV = 68
vWO = 100
vA = 116
vT = 132
NVGPR = 152

def gen():
    header()
    e("    s_cmp_ge_u32 s2, 256")
    e("    s_cbranch_scc1 L_end")
    e("    s_load_dwordx16 s[4:19], s[0:1], 0")
    e("    v_and_b32 v1, 63, v0              ; lane")
    e("    v_lshrrev_b32 v2, 6, v0")
    e("    s_and_b32 s3, s2, 7")
    e("    v_readfirstlane_b32 s56, v2")
    e("    s_lshr_b32 s57, s2, 3")
    e("    s_lshr_b32 s58, s57, 3")
    e("    s_lshl_b32 s52, s3, 2")
    e("    s_add_u32 s52, s52, s58           ; h")
    e("    s_and_b32 s53, s57, 7             ; j")
    e("    s_lshr_b32 s54, s53, 2            ; b")
    e("    s_and_b32 s55, s53, 3             ; s")
    e("    s_waitcnt lgkmcnt(0)")
    srd(sX, 4, 2 * 640 * 2)
    srd(sK, 6, 2 * 32 * 4096 * 128 * 2)
    srd(sV, 8, 2 * 32 * 4096 * 128 * 2)
    srd(sWQ, 10, 640 * 4096 * 2)
    srd(sWO, 12, 4096 * 640 * 2)
    srd(sOUT, 14, 2 * 640 * 2)
    srd(sDBG, 16, 256)
    srd(sWS, 18, WS_BYTES)
    stamp(0)
    e("    s_cmp_eq_u32 s56, 8")
    e("    s_cbranch_scc1 L_control")
    e("    v_lshrrev_b32 v3, 4, v1           ; g = lane/16")
    e("    v_and_b32 v4, 15, v1              ; c16")
    e("    s_mul_i32 s60, s53, 80")
    e("    s_lshl_b32 s61, s56, 2")
    e("    s_add_u32 s60, s60, s61")
    e("    v_add_u32 v5, s60, v3             ; row_0")
    e("    v_lshlrev_b32 v6, 13, v5")
    e("    v_lshl_add_u32 v6, v4, 4, v6")
    e("    s_lshl_b32 s62, s52, 8")
    e("    v_add_u32 v6, s62, v6")
    e("    v_add_u32 v7, 0x40000, v6         ; i=1 (+32 rows)")
    e("    s_mov_b32 s63, 0x80000")
    e("    s_cmp_lt_u32 s56, 4")
    e("    s_cselect_b32 s63, s63, 0x7f000000")
    e("    v_add_u32 v8, s63, v6")
    e(f"    buffer_load_dwordx4 v[{vWQ}:{vWQ+3}], v6, s[{sWQ}:{sWQ+3}], 0 offen nt")
    e(f"    buffer_load_dwordx4 v[{vWQ+4}:{vWQ+7}], v7, s[{sWQ}:{sWQ+3}], 0 offen nt")
    e(f"    buffer_load_dwordx4 v[{vWQ+8}:{vWQ+11}], v8, s[{sWQ}:{sWQ+3}], 0 offen nt")
    e("    v_lshlrev_b32 v9, 1, v5")
    e("    s_mov_b32 s63, 128")
    e("    s_cmp_lt_u32 s56, 4")
    e("    s_cselect_b32 s63, s63, 0x7f000000")
    e("    v_add_u32 v10, s63, v9")
    for i in range(3):
        for bb in range(2):
            r = vX + i * 2 + bb
            if i < 2:
                e(f"    buffer_load_ushort v{r}, v9, s[{sX}:{sX+3}], 0 offen offset:{i*64 + bb*1280}")
            else:
                e(f"    buffer_load_ushort v{r}, v10, s[{sX}:{sX+3}], 0 offen offset:{bb*1280}")
    e("    s_lshl_b32 s65, s54, 25")
    e("    s_lshl_b32 s66, s52, 20")
    e("    s_add_u32 s65, s65, s66")
    e("    s_lshl_b32 s66, s55, 16")
    e("    s_add_u32 s65, s65, s66")
    e("    s_add_u32 s65, s65, 0xc0000")
    e("    s_lshl_b32 s66, s56, 13")
    e("    s_add_u32 s65, s65, s66")
    e("    v_lshlrev_b32 v11, 4, v1")
    e("    v_add_u32 v11, s65, v11")
    e("    v_add_u32 v12, 0x1000, v11")
    for i in range(8):
        vo = 11 if i < 4 else 12
        e(f"    buffer_load_dwordx4 v[{vK+4*i}:{vK+4*i+3}], v{vo}, s[{sK}:{sK+3}], 0 offen offset:{(i%4)*1024} nt")
    for i in range(8):
        vo = 11 if i < 4 else 12
        e(f"    buffer_load_dwordx4 v[{vV+4*i}:{vV+4*i+3}], v{vo}, s[{sV}:{sV+3}], 0 offen offset:{(i%4)*1024} nt")
    e("    v_mul_u32_u24 v13, 205, v1")
    e("    v_lshrrev_b32 v13, 11, v13        ; rg")
    e("    v_mul_u32_u24 v14, 10, v13")
    e("    v_sub_u32 v14, v1, v14            ; ch")
    e("    s_lshl_b32 s67, s52, 7")
    e("    s_lshl_b32 s68, s56, 4")
    e("    s_add_u32 s67, s67, s68           ; h*128 + 16w")
    e("    v_lshl_add_u32 v15, v13, 2, s67   ; row (i=0)")
    e("    v_mul_u32_u24 v15, 1280, v15")
    e("    v_lshl_add_u32 v15, v14, 4, v15")
    e("    s_mul_i32 s68, s53, 160")
    e("    v_add_u32 v15, s68, v15")
    e("    s_mov_b32 s70, -1")
    e("    s_mov_b32 s71, 0xff               ; lanes < 40")
    e("    s_mov_b64 exec, s[70:71]")
    for i in range(4):
        e(f"    buffer_load_dwordx4 v[{vWO+4*i}:{vWO+4*i+3}], v15, s[{sWO}:{sWO+3}], 0 offen offset:{i*1280} nt")
    e("    s_mov_b64 exec, -1")
    for a in range(16):
        e(f"    v_mov_b32 v{vA+a}, 0")
    e("    s_waitcnt vmcnt(20)")
    stamp(1)
    for i in range(3):
        for bb in range(2):
            e(f"    v_lshlrev_b32 v{vT+i*2+bb}, 16, v{vX+i*2+bb}")
    for i in range(3):
        for bb in range(2):
            for ee in range(4):
                e(f"    v_dot2c_f32_bf16 v{vA+bb*8+2*ee}, v{vWQ+4*i+ee}, v{vX+i*2+bb}")
                e(f"    v_dot2c_f32_bf16 v{vA+bb*8+2*ee+1}, v{vWQ+4*i+ee}, v{vT+i*2+bb}")
    e("    s_lshl_b32 s60, s56, 12")
    e("    v_lshlrev_b32 v5, 10, v3")
    e("    v_lshl_add_u32 v5, v4, 5, v5")
    e("    v_add_u32 v5, s60, v5")
    e(f"    ds_write_b128 v5, v[{vA}:{vA+3}] offset:{L_QPART}")
    e(f"    ds_write_b128 v5, v[{vA+4}:{vA+7}] offset:{L_QPART+16}")
    e(f"    ds_write_b128 v5, v[{vA+8}:{vA+11}] offset:{L_QPART+512}")
    e(f"    ds_write_b128 v5, v[{vA+12}:{vA+15}] offset:{L_QPART+528}")
    e("    s_waitcnt lgkmcnt(0)")
    e("    s_barrier                          ; A")
    stamp(2)
    e("    s_barrier                          ; B (q ready)")
    stamp(3)
    e("    v_lshlrev_b32 v5, 4, v4")
    e(f"    ds_read_b128 v[16:19], v5 offset:{L_QBF}")
    e("    s_waitcnt lgkmcnt(0)")
    for i in range(8):
        e(f"    s_waitcnt vmcnt({19-i})")
        e(f"    v_mov_b32 v{20+i}, 0")
        for ee in range(4):
            e(f"    v_dot2c_f32_bf16 v{20+i}, v{vK+4*i+ee}, v{16+ee}")
    for sh in (8, 4, 2, 1):
        for i in range(8):
            e(f"    v_add_f32_dpp v{20+i}, v{20+i}, v{20+i} row_ror:{sh} row_mask:0xf bank_mask:0xf")
    c = (128 ** -0.5) * 1.4426950408889634
    import struct
    cbits = struct.unpack("<I", struct.pack("<f", c))[0]
    e(f"    s_mov_b32 s60, {cbits:#x}")
    for i in range(8):
        e(f"    v_mul_f32 v{20+i}, s60, v{20+i}")
    e("    v_max3_f32 v28, v20, v21, v22")
    e("    v_max3_f32 v29, v23, v24, v25")
    e("    v_max3_f32 v28, v28, v26, v27")
    e("    v_max_f32 v28, v28, v29")
    e("    s_nop 1")
    e("    v_readlane_b32 s60, v28, 0")
    e("    v_readlane_b32 s61, v28, 16")
    e("    v_readlane_b32 s62, v28, 32")
    e("    v_readlane_b32 s63, v28, 48")
    e("    s_nop 1")
    e("    v_mov_b32 v29, s60")
    e("    v_max_f32 v29, s61, v29")
    e("    v_max_f32 v29, s62, v29")
    e("    v_max_f32 v29, s63, v29")
    e("    s_lshl_b32 s60, s56, 2")
    e("    v_mov_b32 v5, s60")
    e(f"    ds_write_b32 v5, v29 offset:{L_WMAX}")
    e("    s_waitcnt lgkmcnt(0)")
    stamp(4)
    e("    s_barrier                          ; M")
    e("    v_mov_b32 v5, 0")
    e(f"    ds_read_b128 v[28:31], v5 offset:{L_WMAX}")
    e(f"    ds_read_b128 v[32:35], v5 offset:{L_WMAX+16}")
    e("    s_waitcnt lgkmcnt(0)")
    e("    v_max3_f32 v28, v28, v29, v30")
    e("    v_max3_f32 v32, v31, v32, v33")
    e("    v_max3_f32 v28, v28, v34, v35")
    e("    v_max_f32 v28, v28, v32")
    for i in range(8):
        e(f"    v_sub_f32 v{20+i}, v{20+i}, v28")
    for i in range(8):
        e(f"    v_exp_f32 v{20+i}, v{20+i}")
    e("    s_nop 0")
    e("    v_add_f32 v29, v20, v21")
    e("    v_add_f32 v30, v22, v23")
    e("    v_add_f32 v31, v24, v25")
    e("    v_add_f32 v32, v26, v27")
    e("    v_add_f32 v29, v29, v30")
    e("    v_add_f32 v31, v31, v32")
    e("    v_add_f32 v29, v29, v31")
    for a in range(8):
        e(f"    v_mov_b32 v{vA+a}, 0")
    for i in range(8):
        e(f"    s_waitcnt vmcnt({11-i})")
        for ee in range(4):
            e(f"    v_lshlrev_b32 v{vT+2*ee}, 16, v{vV+4*i+ee}")
            e(f"    v_and_b32 v{vT+2*ee+1}, 0xffff0000, v{vV+4*i+ee}")
        for a in range(8):
            e(f"    v_fmac_f32 v{vA+a}, v{20+i}, v{vT+a}")
    e("    s_lshl_b32 s60, s56, 2")
    e("    v_add_u32 v5, s60, v3             ; part")
    e(f"    v_mul_u32_u24 v5, {OPART_STRIDE}, v5")
    e("    v_lshl_add_u32 v6, v4, 5, v5")
    e(f"    ds_write_b128 v6, v[{vA}:{vA+3}] offset:{L_OPART}")
    e(f"    ds_write_b128 v6, v[{vA+4}:{vA+7}] offset:{L_OPART+16}")
    e(f"    ds_write_b32 v5, v29 offset:{L_OPART+512}")
    e("    s_waitcnt lgkmcnt(0)")
    stamp(5)
    e("    s_barrier                          ; C")
    e("    s_cmp_ge_u32 s56, 3")
    e("    s_cbranch_scc1 L_skip_comb")
    e("    v_lshlrev_b32 v5, 2, v0           ; t*4")
    for half in range(2):
        for p in range(16):
            e(f"    ds_read_b32 v{vK+p}, v5 offset:{L_OPART + (half*16+p)*OPART_STRIDE}")
        e("    s_waitcnt lgkmcnt(0)")
        if half == 0:
            e(f"    v_add_f32 v6, v{vK}, v{vK+1}")
            rng = range(2, 16)
        else:
            rng = range(0, 16)
        for p in rng:
            e(f"    v_add_f32 v6, v6, v{vK+p}")
    e("    v_cmp_eq_u32 vcc, 129, v0")
    e("    s_nop 1")
    e("    v_cndmask_b32 v6, v6, v28, vcc")
    e("    v_cmp_eq_u32 vcc, -1, v6")
    e("    v_mov_b32 v7, 0x7fc00000")
    e("    s_nop 0")
    e("    v_cndmask_b32 v6, v6, v7, vcc")
    e("    s_lshl_b32 s60, s54, 5")
    e("    s_add_u32 s60, s60, s52")
    e("    s_lshl_b32 s60, s60, 2")
    e("    s_add_u32 s60, s60, s55")
    e("    s_lshl_b32 s60, s60, 10")
    e(f"    s_add_u32 s60, s60, {WS_OP}")
    e("    v_add_u32 v5, s60, v5")
    e("    v_cmp_gt_u32 vcc, 130, v0")
    e("    s_and_saveexec_b64 s[72:73], vcc")
    e(f"    buffer_store_dword v6, v5, s[{sWS}:{sWS+3}], 0 offen sc1")
    e("    s_mov_b64 exec, s[72:73]")
    e("L_skip_comb:")
    stamp(6)
    e("    s_lshl_b32 s60, s52, 12           ; h*4096")
    e(f"    s_add_u32 s60, s60, {WS_OP}")
    e("    s_lshl_b32 s61, s56, 6            ; 16w*4")
    e("    s_add_u32 s61, s61, s60")
    e("    v_lshl_add_u32 v5, v13, 4, s61    ; + 4rg*4")
    e("    v_add_u32 v6, 0x20000, v5         ; b'=1")
    e("    v_mov_b32 v7, s60")
    e("    v_add_u32 v8, 0x20000, v7")
    e("    s_mov_b32 s64, 0")
    e("    s_mov_b64 exec, s[70:71]")
    e("L_poll2:")
    for bb in range(2):
        for ss in range(4):
            r = vK + (bb * 4 + ss) * 4
            e(f"    buffer_load_dwordx4 v[{r}:{r+3}], v{5+bb}, s[{sWS}:{sWS+3}], 0 offen offset:{ss*1024} sc1")
    for bb in range(2):
        for ss in range(4):
            r = vV + (bb * 4 + ss) * 2
            e(f"    buffer_load_dwordx2 v[{r}:{r+1}], v{7+bb}, s[{sWS}:{sWS+3}], 0 offen offset:{ss*1024+512} sc1")
    e("    s_waitcnt vmcnt(0)")
    regs = list(range(vK, vK + 32)) + list(range(vV, vV + 16))
    e(f"    v_max3_u32 v9, v{regs[0]}, v{regs[1]}, v{regs[2]}")
    k = 3
    while k < len(regs):
        if k + 1 < len(regs):
            e(f"    v_max3_u32 v9, v9, v{regs[k]}, v{regs[k+1]}")
            k += 2
        else:
            e(f"    v_max_u32 v9, v9, v{regs[k]}")
            k += 1
    e("    v_cmp_eq_u32 s[74:75], -1, v9")
    e("    s_add_u32 s64, s64, 1")
    e("    s_cmp_eq_u64 s[74:75], 0")
    e("    s_cbranch_scc1 L_poll2_done")
    e(f"    s_cmp_ge_u32 s64, {SPIN_MAX}")
    e("    s_cbranch_scc1 L_poll2_done")
    e("    s_sleep 1")
    e("    s_branch L_poll2")
    e("L_poll2_done:")
    stamp(7)
    for bb in range(2):
        l = [vV + (bb * 4 + ss) * 2 for ss in range(4)]
        m = [x + 1 for x in l]
        e(f"    v_max3_f32 v9, v{m[0]}, v{m[1]}, v{m[2]}")
        e(f"    v_max_f32 v9, v9, v{m[3]}")
        for ss in range(4):
            e(f"    v_sub_f32 v{vT+ss}, v{m[ss]}, v9")
        for ss in range(4):
            e(f"    v_exp_f32 v{vT+ss}, v{vT+ss}")
        e("    s_nop 0")
        e(f"    v_mul_f32 v10, v{vT}, v{l[0]}")
        for ss in range(1, 4):
            e(f"    v_fmac_f32 v10, v{vT+ss}, v{l[ss]}")
        e("    v_rcp_f32 v10, v10")
        for r in range(4):
            e(f"    v_mul_f32 v{vT+4+r}, v{vT}, v{vK+(bb*4)*4+r}")
            for ss in range(1, 4):
                e(f"    v_fmac_f32 v{vT+4+r}, v{vT+ss}, v{vK+(bb*4+ss)*4+r}")
        for r in range(4):
            e(f"    v_mul_f32 v{vT+4+r}, v{vT+4+r}, v10")
        e(f"    v_cvt_pk_bf16_f32 v{vT+8}, v{vT+4}, v{vT+5}")
        e(f"    v_cvt_pk_bf16_f32 v{vT+9}, v{vT+6}, v{vT+7}")
        for p in range(2):
            base = 16 + (bb * 4 + 2 * p) * 2
            e(f"    v_and_b32 v{base}, 0xffff, v{vT+8+p}")
            e(f"    v_lshlrev_b32 v{base+1}, 16, v{vT+8+p}")
            e(f"    v_lshrrev_b32 v{base+2}, 16, v{vT+8+p}")
            e(f"    v_and_b32 v{base+3}, 0xffff0000, v{vT+8+p}")
    for a in range(16):
        e(f"    v_mov_b32 v{vA+a}, 0")
    for r in range(4):
        for bb in range(2):
            lo = 16 + (bb * 4 + r) * 2
            for ee in range(4):
                e(f"    v_dot2c_f32_bf16 v{vA+bb*8+2*ee}, v{vWO+4*r+ee}, v{lo}")
                e(f"    v_dot2c_f32_bf16 v{vA+bb*8+2*ee+1}, v{vWO+4*r+ee}, v{lo+1}")
    e("    s_lshl_b32 s60, s56, 2")
    e("    v_add_u32 v5, s60, v13")
    e("    v_mul_u32_u24 v5, 640, v5")
    e("    v_lshl_add_u32 v5, v14, 5, v5")
    e(f"    ds_write_b128 v5, v[{vA}:{vA+3}] offset:{L_YPART}")
    e(f"    ds_write_b128 v5, v[{vA+4}:{vA+7}] offset:{L_YPART+16}")
    e(f"    ds_write_b128 v5, v[{vA+8}:{vA+11}] offset:{L_YPART+320}")
    e(f"    ds_write_b128 v5, v[{vA+12}:{vA+15}] offset:{L_YPART+336}")
    e("    s_mov_b64 exec, -1")
    e("    s_waitcnt lgkmcnt(0)")
    e("    s_barrier                          ; D")
    e("    s_cmp_ge_u32 s56, 3")
    e("    s_cbranch_scc1 L_end")
    e("    v_lshlrev_b32 v5, 2, v0           ; t*4")
    for half in range(2):
        for p in range(16):
            e(f"    ds_read_b32 v{vK+p}, v5 offset:{L_YPART + (half*16+p)*640}")
        e("    s_waitcnt lgkmcnt(0)")
        if half == 0:
            e(f"    v_add_f32 v6, v{vK}, v{vK+1}")
            rng = range(2, 16)
        else:
            rng = range(0, 16)
        for p in rng:
            e(f"    v_add_f32 v6, v6, v{vK+p}")
    e("    v_cmp_eq_u32 vcc, -1, v6")
    e("    v_mov_b32 v7, 0x7fc00000")
    e("    s_nop 0")
    e("    v_cndmask_b32 v6, v6, v7, vcc")
    e("    s_lshl_b32 s60, s53, 5")
    e("    s_add_u32 s60, s60, s52")
    e("    s_lshl_b32 s60, s60, 10")
    e(f"    s_add_u32 s60, s60, {WS_YP}")
    e("    v_add_u32 v7, s60, v5")
    e("    v_cmp_gt_u32 vcc, 160, v0")
    e("    s_and_saveexec_b64 s[72:73], vcc")
    e("    s_cbranch_execz L_end")
    e(f"    buffer_store_dword v6, v7, s[{sWS}:{sWS+3}], 0 offen sc1")
    stamp(8)
    e("    s_lshl_b32 s60, s53, 2")
    e("    s_cmp_lg_u32 s60, s52")
    e("    s_cbranch_scc1 L_dump0" if STAMPS else "    s_cbranch_scc1 L_end")
    e("    v_and_b32 v8, 31, v1")
    e("    v_lshlrev_b32 v8, 2, v8")
    e("    s_mov_b32 s64, 0")
    e("L_poll3a:")
    e(f"    buffer_load_dword v9, v8, s[{sDBG}:{sDBG+3}], 0 offen sc1")
    e("    s_waitcnt vmcnt(0)")
    e("    v_cmp_gt_u32 s[74:75], 8, v9")
    e("    s_add_u32 s64, s64, 1")
    e("    s_cmp_eq_u64 s[74:75], 0")
    e("    s_cbranch_scc1 L_poll3a_done")
    e(f"    s_cmp_ge_u32 s64, {SPIN_MAX}")
    e("    s_cbranch_scc1 L_poll3a_done")
    e("    s_sleep 1")
    e("    s_branch L_poll3a")
    e("L_poll3a_done:")
    e("    s_lshl_b32 s60, s53, 15")
    e(f"    s_add_u32 s60, s60, {WS_YP}")
    e("    v_add_u32 v7, s60, v5")
    for q in range(1, 8):
        e(f"    v_add_u32 v{7+q}, {q*4096}, v7")
    e("    s_mov_b32 s64, 0")
    e("L_poll3:")
    for hh in range(32):
        e(f"    buffer_load_dword v{vK+hh}, v{7+hh//4}, s[{sWS}:{sWS+3}], 0 offen offset:{(hh%4)*1024} sc1")
    e("    s_waitcnt vmcnt(0)")
    e(f"    v_max3_u32 v16, v{vK}, v{vK+1}, v{vK+2}")
    for k in range(3, 31, 2):
        e(f"    v_max3_u32 v16, v16, v{vK+k}, v{vK+k+1}")
    e(f"    v_max_u32 v16, v16, v{vK+31}")
    e("    v_cmp_eq_u32 s[74:75], -1, v16")
    e("    s_add_u32 s64, s64, 1")
    e("    s_cmp_eq_u64 s[74:75], 0")
    e("    s_cbranch_scc1 L_poll3_done")
    e(f"    s_cmp_ge_u32 s64, {SPIN_MAX}")
    e("    s_cbranch_scc1 L_poll3_done")
    e("    s_sleep 1")
    e("    s_branch L_poll3")
    e("L_poll3_done:")
    e(f"    v_add_f32 v6, v{vK}, v{vK+1}")
    for hh in range(2, 32):
        e(f"    v_add_f32 v6, v6, v{vK+hh}")
    e("    v_cvt_pk_bf16_f32 v6, v6, v6")
    e("    v_cmp_le_u32 vcc, 80, v0")
    e("    v_mov_b32 v7, 0")
    e("    v_mov_b32 v8, 560")
    e("    v_cndmask_b32 v7, v7, v8, vcc     ; +560 when t>=80")
    e("    v_add_u32 v7, v7, v0")
    e("    s_mul_i32 s60, s53, 80")
    e("    v_add_u32 v7, s60, v7")
    e("    v_lshlrev_b32 v7, 1, v7")
    e(f"    buffer_store_short v6, v7, s[{sOUT}:{sOUT+3}], 0 offen")
    stamp(9)
    if STAMPS:
        e("L_dump0:")
        e("    s_cmp_lg_u32 s56, 0")
        e("    s_cbranch_scc1 L_end")
        dump_stamps(list(range(10)))
    e("    s_branch L_end")
    e("L_control:")
    for r in range(4):
        e(f"    v_mov_b32 v{16+r}, -1")
    e("    s_lshl_b32 s60, s54, 5")
    e("    s_add_u32 s60, s60, s52")
    e("    s_lshl_b32 s60, s60, 2")
    e("    s_add_u32 s60, s60, s55")
    e("    s_lshl_b32 s60, s60, 10")
    e(f"    s_add_u32 s60, s60, {WS_OP}")
    e("    v_lshlrev_b32 v5, 4, v1")
    e("    v_add_u32 v6, s60, v5")
    e(f"    buffer_store_dwordx4 v[16:19], v6, s[{sWS}:{sWS+3}], 0 offen sc1")
    e("    s_lshl_b32 s60, s53, 5")
    e("    s_add_u32 s60, s60, s52")
    e("    s_lshl_b32 s60, s60, 10")
    e(f"    s_add_u32 s60, s60, {WS_YP}")
    e("    v_add_u32 v7, s60, v5")
    e(f"    buffer_store_dwordx4 v[16:19], v7, s[{sWS}:{sWS+3}], 0 offen sc1")
    e("    s_barrier                          ; A")
    for grp in range(4):
        for p in range(8):
            e(f"    ds_read_b128 v[{vK+4*p}:{vK+4*p+3}], v5 offset:{L_QPART + (grp*8+p)*1024}")
        e("    s_waitcnt lgkmcnt(0)")
        for p in range(8):
            for ee in range(4):
                if grp == 0 and p == 0:
                    e(f"    v_mov_b32 v{20+ee}, v{vK+ee}")
                else:
                    e(f"    v_add_f32 v{20+ee}, v{20+ee}, v{vK+4*p+ee}")
    e("    s_lshl_b32 s60, s52, 3")
    e("    s_add_u32 s60, s60, s53")
    e("    s_lshl_b32 s60, s60, 10")
    e("    v_add_u32 v6, s60, v5")
    e(f"    buffer_store_dwordx4 v[20:23], v6, s[{sWS}:{sWS+3}], 0 offen sc1")
    e("    s_waitcnt vmcnt(0)")
    e("    s_lshl_b32 s60, s52, 2")
    e("    v_mov_b32 v8, s60")
    e("    v_mov_b32 v9, 1")
    e("    s_mov_b64 exec, 1")
    e(f"    buffer_atomic_add v9, v8, s[{sDBG}:{sDBG+3}], 0 offen sc1")
    e("    s_mov_b64 exec, -1")
    stamp(10)
    e("    s_mov_b32 s64, 0")
    e("L_poll1:")
    e(f"    buffer_load_dword v10, v8, s[{sDBG}:{sDBG+3}], 0 offen sc1")
    e("    s_waitcnt vmcnt(0)")
    e("    v_readfirstlane_b32 s61, v10")
    e("    s_add_u32 s64, s64, 1")
    e("    s_cmp_ge_u32 s61, 8")
    e("    s_cbranch_scc1 L_poll1_done")
    e(f"    s_cmp_ge_u32 s64, {SPIN_MAX}")
    e("    s_cbranch_scc1 L_poll1_done")
    e("    s_sleep 1")
    e("    s_branch L_poll1")
    e("L_poll1_done:")
    stamp(11)
    e("    s_lshl_b32 s60, s52, 13")
    e("    s_lshl_b32 s61, s54, 9")
    e("    s_add_u32 s60, s60, s61")
    e("    v_lshlrev_b32 v6, 3, v1")
    e("    v_add_u32 v6, s60, v6")
    e("    v_add_u32 v7, 0x1000, v6")
    for jj in range(8):
        e(f"    buffer_load_dwordx2 v[{vK+2*jj}:{vK+2*jj+1}], v{6 + jj//4}, s[{sWS}:{sWS+3}], 0 offen offset:{(jj%4)*1024} sc1")
    e("    s_waitcnt vmcnt(0)")
    e(f"    v_add_f32 v20, v{vK}, v{vK+2}")
    e(f"    v_add_f32 v21, v{vK+1}, v{vK+3}")
    for jj in range(2, 8):
        e(f"    v_add_f32 v20, v20, v{vK+2*jj}")
        e(f"    v_add_f32 v21, v21, v{vK+2*jj+1}")
    e("    v_cvt_pk_bf16_f32 v20, v20, v21")
    e("    v_lshlrev_b32 v6, 2, v1")
    e(f"    ds_write_b32 v6, v20 offset:{L_QBF}")
    e("    s_waitcnt lgkmcnt(0)")
    e("    s_barrier                          ; B")
    stamp(12)
    dump_stamps([10,11,12])
    e("L_end:")
    e("    s_endpgm")
    e('.section .rodata,"a"')
    e(".p2align 6")
    e(f".amdhsa_kernel {NAME}")
    e(f"  .amdhsa_next_free_vgpr {NVGPR}")
    e("  .amdhsa_next_free_sgpr 102")
    e(f"  .amdhsa_accum_offset {NVGPR}")
    e("  .amdhsa_group_segment_fixed_size 0")
    e("  .amdhsa_kernarg_size 64")
    e("  .amdhsa_user_sgpr_count 2")
    e("  .amdhsa_user_sgpr_kernarg_segment_ptr 1")
    e("  .amdhsa_system_sgpr_workgroup_id_x 1")
    e(".end_amdhsa_kernel")

gen()
path = sys.argv[1] if len(sys.argv) > 1 else "standalone__sliding_block_cached__decode.s"
open(path, "w").write("\n".join(out) + "\n")
print("wrote", path, len(out), "lines")
```

```python
import sys, os, struct

NAME = "standalone__sliding_block_cached__decode_kernel"
WS_QP = 0
WS_OP = 512 * 1024
WS_YP = 1024 * 1024
WS_BYTES = 1536 * 1024
WS_ST = 2 * 1024 * 1024

L_QBF = 0
L_WMAX = 256
L_TAG = 320
L_OFIN = 512
L_OPART = 2560
OPART_STRIDE = 528
L_YPART = 19456
L_QPART = 2560
LDS_BYTES = 19456 + 20480 + 1024

SPIN_MAX = 200000
STAMPS = int(os.environ.get("STAMPS", "0"))
NT = os.environ.get("NT", "nt")
D = int(os.environ.get("D", "2"))
D0 = int(os.environ.get("D0", "4"))
BURST = int(os.environ.get("BURST", "12"))
if STAMPS:
    WS_BYTES = 3 * 1024 * 1024

out = []
def e(s=""):
    out.append(s)

sK, sV, sWQ, sWO, sX, sWS, sOUT, sDBG = 20, 24, 28, 32, 36, 40, 44, 48

def stamp(k):
    if STAMPS:
        e(f"    s_memrealtime s[{76+2*k}:{77+2*k}]")
def dump_stamps(ks):
    if not STAMPS:
        return
    e("    s_waitcnt lgkmcnt(0)")
    e("    s_mov_b64 exec, 1")
    e("    s_lshl_b32 s60, s2, 7")
    e(f"    s_add_u32 s60, s60, {WS_ST}")
    e("    v_mov_b32 v5, s60")
    for k in ks:
        e(f"    v_mov_b32 v6, s{76+2*k}")
        e(f"    v_mov_b32 v7, s{77+2*k}")
        e(f"    buffer_store_dwordx2 v[6:7], v5, s[{sWS}:{sWS+3}], 0 offen offset:{8*k}")
        e("    s_nop 1")

def srd(d, p, nbytes):
    e(f"    s_mov_b32 s{d}, s{p}")
    e(f"    s_and_b32 s{d+1}, s{p+1}, 0xffff")
    e(f"    s_mov_b32 s{d+2}, {nbytes:#x}")
    e(f"    s_mov_b32 s{d+3}, 0x00020000")

vK = 16; vV = 48; vWO = 80; vA = 96; vS = 112; vQ = 120; vT = 124
vWQ = 128
vX = 140
vXH = 146
NVGPR = 168
vTAG = 152

queue = []
def issued(tag):
    queue.append(tag)
def wait_for(tag):
    n = len(queue) - 1 - queue.index(tag)
    e(f"    s_waitcnt vmcnt({n})")

def issue_stream(tag):
    kind, i = tag
    if kind == "k":
        e(f"    buffer_load_dwordx4 v[{vK+4*i}:{vK+4*i+3}], v{11 if i<4 else 12}, s[{sK}:{sK+3}], 0 offen offset:{(i%4)*1024} {NT}")
    elif kind == "v":
        e(f"    buffer_load_dwordx4 v[{vV+4*i}:{vV+4*i+3}], v{11 if i<4 else 12}, s[{sV}:{sV+3}], 0 offen offset:{(i%4)*1024} {NT}")
    else:
        e("    s_mov_b64 exec, s[70:71]")
        e(f"    buffer_load_dwordx4 v[{vWO+4*i}:{vWO+4*i+3}], v15, s[{sWO}:{sWO+3}], 0 offen offset:{i*1280} {NT}")
        e("    s_mov_b64 exec, -1")
    issued(tag)

def tagcheck(granules, tl, th, tmp):
    first = True
    for g in granules:
        if first:
            e(f"    v_xor_b32 v{tmp}, v{g+2}, v{tl}")
            e(f"    v_xor_b32 v{tmp+1}, v{g+3}, v{th}")
            first = False
        else:
            e(f"    v_xor_b32 v{tmp+2}, v{g+2}, v{tl}")
            e(f"    v_xor_b32 v{tmp+3}, v{g+3}, v{th}")
            e(f"    v_or3_b32 v{tmp}, v{tmp}, v{tmp+2}, v{tmp+3}")
    e(f"    v_or_b32 v{tmp}, v{tmp}, v{tmp+1}")
    e(f"    v_cmp_ne_u32 s[74:75], 0, v{tmp}")

def spin_tail(lbl, slp=1):
    e("    s_add_u32 s64, s64, 1")
    e("    s_cmp_eq_u64 s[74:75], 0")
    e(f"    s_cbranch_scc1 {lbl}_done")
    e(f"    s_cmp_ge_u32 s64, {SPIN_MAX}")
    e(f"    s_cbranch_scc1 {lbl}_done")
    e(f"    s_sleep {slp}")
    e(f"    s_branch {lbl}")
    e(f"{lbl}_done:")

def light_poll(lbl, vaddr, nl, tl, th, tmp, slp=1):
    e(f"    s_mov_b64 s[72:73], exec")
    if nl <= 32:
        e(f"    s_mov_b64 exec, {(1<<nl)-1:#x}")
    e("    s_mov_b32 s64, 0")
    e(f"{lbl}:")
    e(f"    buffer_load_dwordx2 v[{tmp}:{tmp+1}], v{vaddr}, s[{sWS}:{sWS+3}], 0 offen offset:8 sc1")
    e("    s_waitcnt vmcnt(0)")
    e(f"    v_xor_b32 v{tmp}, v{tmp}, v{tl}")
    e(f"    v_xor_b32 v{tmp+1}, v{tmp+1}, v{th}")
    e(f"    v_or_b32 v{tmp}, v{tmp}, v{tmp+1}")
    e(f"    v_cmp_ne_u32 s[74:75], 0, v{tmp}")
    spin_tail(lbl, slp)
    e(f"    s_mov_b64 exec, s[72:73]")

def gen():
    e("; Fused decode attention: q-proj -> sliding window attention (flash-decoding split) -> out-proj")
    e(f"; @launch grid=(256,1,1) block=(576,1,1) lds={LDS_BYTES}")
    e('.amdgcn_target "amdgcn-amd-amdhsa--gfx950"')
    e(".text")
    e(f".globl {NAME}")
    e(".p2align 8")
    e(f".type {NAME},@function")
    e(f"{NAME}:")
    e("    s_cmp_ge_u32 s2, 256")
    e("    s_cbranch_scc1 L_end")
    e("    s_load_dwordx16 s[4:19], s[0:1], 0")
    e("    v_and_b32 v1, 63, v0              ; lane")
    e("    v_lshrrev_b32 v2, 6, v0")
    e("    s_and_b32 s3, s2, 7")
    e("    v_readfirstlane_b32 s59, v2")
    e("    s_lshr_b32 s57, s2, 3")
    e("    s_lshr_b32 s58, s57, 3")
    e("    s_lshl_b32 s52, s3, 2")
    e("    s_add_u32 s52, s52, s58           ; h")
    e("    s_and_b32 s53, s57, 7             ; j")
    e("    s_lshr_b32 s54, s53, 2            ; b")
    e("    s_and_b32 s55, s53, 3             ; s")
    e("    v_lshrrev_b32 v3, 4, v1           ; g = lane/16")
    e("    v_and_b32 v4, 15, v1              ; c16")
    e("    s_waitcnt lgkmcnt(0)")
    srd(sX, 4, 2 * 640 * 2)
    srd(sK, 6, 2 * 32 * 4096 * 128 * 2)
    srd(sV, 8, 2 * 32 * 4096 * 128 * 2)
    srd(sWQ, 10, 640 * 4096 * 2)
    srd(sWO, 12, 4096 * 640 * 2)
    srd(sOUT, 14, 2 * 640 * 2)
    srd(sDBG, 16, 256)
    srd(sWS, 18, WS_BYTES)
    stamp(0)
    e("    s_cmp_eq_u32 s59, 8")
    e("    s_cbranch_scc1 L_control")
    e("    s_mul_i32 s60, s53, 80")
    e("    s_lshl_b32 s61, s59, 2")
    e("    s_add_u32 s60, s60, s61")
    e("    v_add_u32 v5, s60, v3             ; row_0")
    e("    v_lshlrev_b32 v6, 13, v5")
    e("    v_lshl_add_u32 v6, v4, 4, v6")
    e("    s_lshl_b32 s62, s52, 8")
    e("    v_add_u32 v6, s62, v6")
    e("    v_add_u32 v7, 0x40000, v6")
    e("    s_mov_b32 s63, 0x80000")
    e("    s_cmp_lt_u32 s59, 4")
    e("    s_cselect_b32 s63, s63, 0x7f000000")
    e("    v_add_u32 v8, s63, v6")
    for i in range(3):
        e(f"    buffer_load_dwordx4 v[{vWQ+4*i}:{vWQ+4*i+3}], v{6+i}, s[{sWQ}:{sWQ+3}], 0 offen {NT}")
        issued(("wq", i))
    e("    v_lshlrev_b32 v9, 1, v5")
    e("    s_mov_b32 s63, 128")
    e("    s_cmp_lt_u32 s59, 4")
    e("    s_cselect_b32 s63, s63, 0x7f000000")
    e("    v_add_u32 v10, s63, v9")
    for i in range(3):
        for bb in range(2):
            r = vX + i * 2 + bb
            if i < 2:
                e(f"    buffer_load_ushort v{r}, v9, s[{sX}:{sX+3}], 0 offen offset:{i*64 + bb*1280}")
            else:
                e(f"    buffer_load_ushort v{r}, v10, s[{sX}:{sX+3}], 0 offen offset:{bb*1280}")
            issued(("x", i * 2 + bb))
    e("    s_lshl_b32 s65, s54, 25")
    e("    s_lshl_b32 s66, s52, 20")
    e("    s_add_u32 s65, s65, s66")
    e("    s_lshl_b32 s66, s55, 16")
    e("    s_add_u32 s65, s65, s66")
    e("    s_add_u32 s65, s65, 0xc0000")
    e("    s_lshl_b32 s66, s59, 13")
    e("    s_add_u32 s65, s65, s66")
    e("    v_lshlrev_b32 v11, 4, v1")
    e("    v_add_u32 v11, s65, v11")
    e("    v_add_u32 v12, 0x1000, v11")
    e("    s_barrier")
    seq = [("k", i) for i in range(8)] + [("v", i) for i in range(8)] + [("wo", i) for i in range(4)]
    nxt = 0
    for _ in range(D0):
        issue_stream(seq[nxt]); nxt += 1
    e("    v_mul_u32_u24 v13, 205, v1")
    e("    v_lshrrev_b32 v13, 11, v13        ; rg")
    e("    v_mul_u32_u24 v14, 10, v13")
    e("    v_sub_u32 v14, v1, v14            ; ch")
    e("    s_lshl_b32 s67, s52, 7")
    e("    s_lshl_b32 s68, s59, 4")
    e("    s_add_u32 s67, s67, s68           ; h*128 + 16w")
    e("    v_lshl_add_u32 v15, v13, 2, s67   ; row (i=0)")
    e("    v_mul_u32_u24 v15, 1280, v15")
    e("    v_lshl_add_u32 v15, v14, 4, v15")
    e("    s_mul_i32 s68, s53, 160")
    e("    v_add_u32 v15, s68, v15")
    e("    s_mov_b32 s70, -1")
    e("    s_mov_b32 s71, 0xff               ; lanes < 40")
    for a in range(16):
        e(f"    v_mov_b32 v{vA+a}, 0")
    wait_for(("x", 5))
    stamp(1)
    for i in range(6):
        e(f"    v_lshlrev_b32 v{vXH+i}, 16, v{vX+i}")
    for i in range(3):
        for bb in range(2):
            for ee in range(4):
                e(f"    v_dot2c_f32_bf16 v{vA+bb*8+2*ee}, v{vWQ+4*i+ee}, v{vX+i*2+bb}")
                e(f"    v_dot2c_f32_bf16 v{vA+bb*8+2*ee+1}, v{vWQ+4*i+ee}, v{vXH+i*2+bb}")
    e("    s_lshl_b32 s60, s59, 12")
    e("    v_lshlrev_b32 v5, 10, v3")
    e("    v_lshl_add_u32 v5, v4, 5, v5")
    e("    v_add_u32 v5, s60, v5")
    e(f"    ds_write_b128 v5, v[{vA}:{vA+3}] offset:{L_QPART}")
    e(f"    ds_write_b128 v5, v[{vA+4}:{vA+7}] offset:{L_QPART+16}")
    e(f"    ds_write_b128 v5, v[{vA+8}:{vA+11}] offset:{L_QPART+512}")
    e(f"    ds_write_b128 v5, v[{vA+12}:{vA+15}] offset:{L_QPART+528}")
    e("    s_waitcnt lgkmcnt(0)")
    e("    s_barrier                          ; A")
    stamp(2)
    while nxt < len(seq):
        if nxt < BURST:
            wait_for(seq[nxt - D])
        issue_stream(seq[nxt]); nxt += 1
    e("    s_barrier                          ; B (q ready)")
    stamp(3)
    e("    v_lshlrev_b32 v5, 4, v4")
    e(f"    ds_read_b128 v[{vQ}:{vQ+3}], v5 offset:{L_QBF}")
    e("    v_mov_b32 v5, 0")
    e(f"    ds_read_b64 v[{vTAG}:{vTAG+1}], v5 offset:{L_TAG}")
    for i in range(8):
        e(f"    v_mov_b32 v{vS+i}, 0")
    wait_for(("k", 7))
    e("    s_waitcnt lgkmcnt(0)")
    for i in range(8):
        for ee in range(4):
            e(f"    v_dot2c_f32_bf16 v{vS+i}, v{vK+4*i+ee}, v{vQ+ee}")
    e("    s_nop 2")
    for sh in (8, 4, 2, 1):
        for i in range(8):
            e(f"    v_add_f32_dpp v{vS+i}, v{vS+i}, v{vS+i} row_ror:{sh} row_mask:0xf bank_mask:0xf")
    c = (128 ** -0.5) * 1.4426950408889634
    cbits = struct.unpack("<I", struct.pack("<f", c))[0]
    e(f"    s_mov_b32 s60, {cbits:#x}")
    for i in range(8):
        e(f"    v_mul_f32 v{vS+i}, s60, v{vS+i}")
    e(f"    v_max3_f32 v6, v{vS}, v{vS+1}, v{vS+2}")
    e(f"    v_max3_f32 v7, v{vS+3}, v{vS+4}, v{vS+5}")
    e(f"    v_max3_f32 v6, v6, v{vS+6}, v{vS+7}")
    e("    v_max_f32 v6, v6, v7")
    e("    s_nop 1")
    e("    v_readlane_b32 s60, v6, 0")
    e("    v_readlane_b32 s61, v6, 16")
    e("    v_readlane_b32 s62, v6, 32")
    e("    v_readlane_b32 s63, v6, 48")
    e("    s_nop 1")
    e("    v_mov_b32 v7, s60")
    e("    v_max_f32 v7, s61, v7")
    e("    v_max_f32 v7, s62, v7")
    e("    v_max_f32 v7, s63, v7")
    e("    s_lshl_b32 s60, s59, 2")
    e("    v_mov_b32 v5, s60")
    e(f"    ds_write_b32 v5, v7 offset:{L_WMAX}")
    e("    s_waitcnt lgkmcnt(0)")
    stamp(4)
    e("    s_barrier                          ; M")
    e("    v_mov_b32 v5, 0")
    e(f"    ds_read_b128 v[{vK}:{vK+3}], v5 offset:{L_WMAX}")
    e(f"    ds_read_b128 v[{vK+4}:{vK+7}], v5 offset:{L_WMAX+16}")
    e("    s_waitcnt lgkmcnt(0)")
    e(f"    v_max3_f32 v10, v{vK}, v{vK+1}, v{vK+2}")
    e(f"    v_max3_f32 v6, v{vK+3}, v{vK+4}, v{vK+5}")
    e(f"    v_max3_f32 v10, v10, v{vK+6}, v{vK+7}")
    e("    v_max_f32 v10, v10, v6")
    for i in range(8):
        e(f"    v_sub_f32 v{vS+i}, v{vS+i}, v10")
    for i in range(8):
        e(f"    v_exp_f32 v{vS+i}, v{vS+i}")
    e("    s_nop 0")
    for i in range(0, 8, 2):
        e(f"    v_cvt_pk_bf16_f32 v{vK+16+i//2}, v{vS+i}, v{vS+i+1}")
    vP = vK
    for i in range(0, 8, 2):
        P = vK + 16 + i // 2
        e(f"    v_and_b32 v{vP+2*i}, 0xffff, v{P}")
        e(f"    v_lshlrev_b32 v{vP+2*i+1}, 16, v{P}")
        e(f"    v_lshrrev_b32 v{vP+2*i+2}, 16, v{P}")
        e(f"    v_and_b32 v{vP+2*i+3}, 0xffff0000, v{P}")
    e(f"    v_add_f32 v6, v{vP+1}, v{vP+3}")
    e(f"    v_add_f32 v7, v{vP+5}, v{vP+7}")
    e(f"    v_add_f32 v8, v{vP+9}, v{vP+11}")
    e(f"    v_add_f32 v9, v{vP+13}, v{vP+15}")
    e("    v_add_f32 v6, v6, v7")
    e("    v_add_f32 v8, v8, v9")
    e("    v_add_f32 v9, v6, v8")
    for a in range(8):
        e(f"    v_mov_b32 v{vA+a}, 0")
    for i in range(8):
        wait_for(("v", i))
        if nxt < len(seq):
            issue_stream(seq[nxt]); nxt += 1
        for ee in range(4):
            e(f"    v_dot2c_f32_bf16 v{vA+2*ee}, v{vV+4*i+ee}, v{vP+2*i}")
            e(f"    v_dot2c_f32_bf16 v{vA+2*ee+1}, v{vV+4*i+ee}, v{vP+2*i+1}")
    while nxt < len(seq):
        issue_stream(seq[nxt]); nxt += 1
    e("    s_lshl_b32 s60, s59, 2")
    e("    v_add_u32 v5, s60, v3             ; part")
    e(f"    v_mul_u32_u24 v5, {OPART_STRIDE}, v5")
    e("    v_lshl_add_u32 v6, v4, 5, v5")
    e(f"    ds_write_b128 v6, v[{vA}:{vA+3}] offset:{L_OPART}")
    e(f"    ds_write_b128 v6, v[{vA+4}:{vA+7}] offset:{L_OPART+16}")
    e(f"    ds_write_b32 v5, v9 offset:{L_OPART+512}")
    e("    s_waitcnt lgkmcnt(0)")
    stamp(5)
    e("    s_barrier                          ; C")
    e("    s_cmp_eq_u32 s59, 3")
    e("    s_cbranch_scc1 L_poller")
    e("    s_cmp_ge_u32 s59, 2")
    e("    s_cbranch_scc1 L_wait_o")
    e("    v_lshlrev_b32 v5, 3, v0           ; t*8")
    for p in range(32):
        e(f"    ds_read_b64 v[{vK+2*p}:{vK+2*p+1}], v5 offset:{L_OPART + p*OPART_STRIDE}")
    e("    s_waitcnt lgkmcnt(0)")
    for st in (16, 8, 4, 2, 1):
        for p in range(st):
            e(f"    v_add_f32 v{vK+2*p}, v{vK+2*p}, v{vK+2*(p+st)}")
            e(f"    v_add_f32 v{vK+2*p+1}, v{vK+2*p+1}, v{vK+2*(p+st)+1}")
    e("    v_cmp_eq_u32 vcc, 64, v0")
    e(f"    v_mov_b32 v{vK+2}, v{vTAG}")
    e(f"    v_mov_b32 v{vK+3}, v{vTAG+1}")
    e(f"    v_cndmask_b32 v{vK+1}, v{vK+1}, v10, vcc")
    e("    s_lshl_b32 s60, s54, 5")
    e("    s_add_u32 s60, s60, s52")
    e("    s_lshl_b32 s60, s60, 2")
    e("    s_add_u32 s60, s60, s55")
    e("    s_lshl_b32 s60, s60, 11")
    e(f"    s_add_u32 s60, s60, {WS_OP}")
    e("    v_lshl_add_u32 v5, v0, 4, s60")
    e("    v_cmp_gt_u32 vcc, 65, v0")
    e("    s_and_saveexec_b64 s[72:73], vcc")
    e(f"    buffer_store_dwordx4 v[{vK}:{vK+3}], v5, s[{sWS}:{sWS+3}], 0 offen sc1")
    e("    s_mov_b64 exec, s[72:73]")
    stamp(6)
    e("    s_branch L_wait_o")
    e("L_poller:")
    e("    s_lshl_b32 s60, s52, 13           ; h*4*2048")
    e(f"    s_add_u32 s60, s60, {WS_OP}")
    e("    v_and_b32 v5, 31, v1")
    e("    v_lshl_add_u32 v5, v5, 5, s60")
    e("    v_lshrrev_b32 v6, 5, v1")
    e("    v_lshlrev_b32 v6, 18, v6          ; b*32*4*2048")
    e("    v_add_u32 v5, v5, v6")
    e("    v_add_u32 v6, s60, v6")
    e("    v_add_u32 v7, 0x1000, v5")
    e("    v_add_u32 v8, 0x1000, v6")
    e("    v_lshrrev_b32 v9, 2, v1")
    e("    v_lshlrev_b32 v9, 18, v9")
    e("    v_and_b32 v2, 3, v1")
    e("    v_lshl_add_u32 v9, v2, 11, v9")
    e("    v_add_u32 v9, s60, v9")
    e("    v_add_u32 v9, 0x400, v9")
    light_poll("L_lp2", 9, 8, vTAG, vTAG + 1, vS)
    e("    s_mov_b32 s64, 0")
    e("L_poll2:")
    G = []
    for ss in range(4):
        for hf in range(2):
            r = vK + (ss * 2 + hf) * 4
            e(f"    buffer_load_dwordx4 v[{r}:{r+3}], v{5 if ss<2 else 7}, s[{sWS}:{sWS+3}], 0 offen offset:{(ss%2)*2048+hf*16} sc1")
            G.append(r)
    for ss in range(4):
        r = vK + 32 + ss * 4
        e(f"    buffer_load_dwordx4 v[{r}:{r+3}], v{6 if ss<2 else 8}, s[{sWS}:{sWS+3}], 0 offen offset:{(ss%2)*2048+1024} sc1")
        G.append(r)
    e("    s_waitcnt vmcnt(0)")
    tagcheck(G, vTAG, vTAG + 1, vS)
    spin_tail("L_poll2")
    l = [vK + 32 + 4 * ss for ss in range(4)]
    m = [x + 1 for x in l]
    def oreg(ss, r):
        return vK + (ss * 2 + r // 2) * 4 + (r % 2)
    T = vA
    e(f"    v_max3_f32 v9, v{m[0]}, v{m[1]}, v{m[2]}")
    e(f"    v_max_f32 v9, v9, v{m[3]}")
    for ss in range(4):
        e(f"    v_sub_f32 v{T+ss}, v{m[ss]}, v9")
    for ss in range(4):
        e(f"    v_exp_f32 v{T+ss}, v{T+ss}")
    e("    s_nop 0")
    e(f"    v_mul_f32 v9, v{T}, v{l[0]}")
    for ss in range(1, 4):
        e(f"    v_fmac_f32 v9, v{T+ss}, v{l[ss]}")
    e("    v_rcp_f32 v9, v9")
    for r in range(4):
        e(f"    v_mul_f32 v{T+4+r}, v{T}, v{oreg(0, r)}")
        for ss in range(1, 4):
            e(f"    v_fmac_f32 v{T+4+r}, v{T+ss}, v{oreg(ss, r)}")
    for r in range(4):
        e(f"    v_mul_f32 v{T+4+r}, v{T+4+r}, v9")
    e(f"    v_cvt_pk_bf16_f32 v{T+8}, v{T+4}, v{T+5}")
    e(f"    v_cvt_pk_bf16_f32 v{T+9}, v{T+6}, v{T+7}")
    for p in range(2):
        base = vS + 4 * p
        e(f"    v_and_b32 v{base}, 0xffff, v{T+8+p}")
        e(f"    v_lshlrev_b32 v{base+1}, 16, v{T+8+p}")
        e(f"    v_lshrrev_b32 v{base+2}, 16, v{T+8+p}")
        e(f"    v_and_b32 v{base+3}, 0xffff0000, v{T+8+p}")
    e("    v_lshlrev_b32 v5, 5, v1")
    e(f"    ds_write_b128 v5, v[{vS}:{vS+3}] offset:{L_OFIN}")
    e(f"    ds_write_b128 v5, v[{vS+4}:{vS+7}] offset:{L_OFIN+16}")
    e("    s_waitcnt lgkmcnt(0)")
    e("L_wait_o:")
    e("    s_barrier")
    stamp(7)
    e("    s_lshl_b32 s60, s59, 7            ; 16w*8")
    e("    v_lshl_add_u32 v5, v13, 5, s60")
    e("    s_mov_b64 exec, s[70:71]")
    e(f"    ds_read_b128 v[{vK}:{vK+3}], v5 offset:{L_OFIN}")
    e(f"    ds_read_b128 v[{vK+4}:{vK+7}], v5 offset:{L_OFIN+16}")
    e(f"    ds_read_b128 v[{vK+8}:{vK+11}], v5 offset:{L_OFIN+1024}")
    e(f"    ds_read_b128 v[{vK+12}:{vK+15}], v5 offset:{L_OFIN+1040}")
    for a in range(16):
        e(f"    v_mov_b32 v{vA+a}, 0")
    e("    s_waitcnt vmcnt(0) lgkmcnt(0)")
    for r in range(4):
        for bb in range(2):
            lo = vK + bb * 8 + r * 2
            for ee in range(4):
                e(f"    v_dot2c_f32_bf16 v{vA+bb*8+2*ee}, v{vWO+4*r+ee}, v{lo}")
                e(f"    v_dot2c_f32_bf16 v{vA+bb*8+2*ee+1}, v{vWO+4*r+ee}, v{lo+1}")
    e("    s_lshl_b32 s60, s59, 2")
    e("    v_add_u32 v5, s60, v13")
    e("    v_mul_u32_u24 v5, 640, v5")
    e("    v_lshl_add_u32 v5, v14, 5, v5")
    e(f"    ds_write_b128 v5, v[{vA}:{vA+3}] offset:{L_YPART}")
    e(f"    ds_write_b128 v5, v[{vA+4}:{vA+7}] offset:{L_YPART+16}")
    e(f"    ds_write_b128 v5, v[{vA+8}:{vA+11}] offset:{L_YPART+320}")
    e(f"    ds_write_b128 v5, v[{vA+12}:{vA+15}] offset:{L_YPART+336}")
    e("    s_mov_b64 exec, -1")
    e("    s_waitcnt lgkmcnt(0)")
    e("    s_barrier                          ; D")
    e("    s_cmp_ge_u32 s59, 2")
    e("    s_cbranch_scc1 L_end")
    e("    v_lshlrev_b32 v5, 3, v0           ; t*8")
    for p in range(32):
        e(f"    ds_read_b64 v[{vK+2*p}:{vK+2*p+1}], v5 offset:{L_YPART + p*640}")
    e("    s_waitcnt lgkmcnt(0)")
    for st in (16, 8, 4, 2, 1):
        for p in range(st):
            e(f"    v_add_f32 v{vK+2*p}, v{vK+2*p}, v{vK+2*(p+st)}")
            e(f"    v_add_f32 v{vK+2*p+1}, v{vK+2*p+1}, v{vK+2*(p+st)+1}")
    e(f"    v_mov_b32 v{vK+2}, v{vTAG}")
    e(f"    v_mov_b32 v{vK+3}, v{vTAG+1}")
    e("    s_lshl_b32 s60, s53, 5")
    e("    s_add_u32 s60, s60, s52")
    e("    s_lshl_b32 s60, s60, 11")
    e(f"    s_add_u32 s60, s60, {WS_YP}")
    e("    v_lshl_add_u32 v7, v0, 4, s60")
    e("    v_cmp_gt_u32 vcc, 80, v0")
    e("    s_and_saveexec_b64 s[72:73], vcc")
    e("    s_cbranch_execz L_end")
    e(f"    buffer_store_dwordx4 v[{vK}:{vK+3}], v7, s[{sWS}:{sWS+3}], 0 offen sc1")
    stamp(8)
    e("    s_lshl_b32 s60, s53, 2")
    e("    s_cmp_lg_u32 s60, s52")
    e("    s_cbranch_scc1 L_dump0" if STAMPS else "    s_cbranch_scc1 L_end")
    e("    s_lshl_b32 s60, s53, 16")
    e(f"    s_add_u32 s60, s60, {WS_YP}")
    e("    v_lshl_add_u32 v7, v0, 4, s60")
    e("    s_mov_b64 s[66:67], exec")
    e("    s_mov_b64 exec, -1")
    e("    v_lshl_add_u32 v9, v1, 11, s60")
    light_poll("L_lp3", 9, 32, vTAG, vTAG + 1, 156)
    e("    s_mov_b64 exec, s[66:67]")
    e("    s_mov_b32 s64, 0")
    R0 = 16
    e("L_poll3:")
    for hh in range(32):
        e(f"    s_mov_b32 s61, {(hh//2)*4096}")
        e(f"    buffer_load_dwordx4 v[{R0+4*hh}:{R0+4*hh+3}], v7, s[{sWS}:{sWS+3}], s61 offen offset:{(hh%2)*2048} sc1")
    e("    s_waitcnt vmcnt(0)")
    tagcheck([R0 + 4 * hh for hh in range(32)], vTAG, vTAG + 1, 156)
    spin_tail("L_poll3")
    for st in (16, 8, 4, 2, 1):
        for p in range(st):
            e(f"    v_add_f32 v{R0+4*p}, v{R0+4*p}, v{R0+4*(p+st)}")
            e(f"    v_add_f32 v{R0+4*p+1}, v{R0+4*p+1}, v{R0+4*(p+st)+1}")
    e(f"    v_cvt_pk_bf16_f32 v6, v{R0}, v{R0+1}")
    e("    v_cmp_le_u32 vcc, 40, v0")
    e("    v_mov_b32 v7, 0")
    e("    v_mov_b32 v8, 560")
    e("    v_cndmask_b32 v7, v7, v8, vcc")
    e("    v_lshl_add_u32 v7, v0, 1, v7")
    e("    s_mul_i32 s60, s53, 80")
    e("    v_add_u32 v7, s60, v7")
    e("    v_lshlrev_b32 v7, 1, v7")
    e(f"    buffer_store_dword v6, v7, s[{sOUT}:{sOUT+3}], 0 offen")
    stamp(9)
    if STAMPS:
        e("L_dump0:")
        e("    s_cmp_lg_u32 s59, 0")
        e("    s_cbranch_scc1 L_end")
        dump_stamps(list(range(10)))
    e("    s_branch L_end")
    e("L_control:")
    e("    v_mov_b32 v8, 0")
    e("    s_cmp_lg_u32 s2, 0")
    e("    s_cbranch_scc1 L_nononce")
    e("    s_memrealtime s[62:63]")
    e("    s_waitcnt lgkmcnt(0)")
    e("    s_or_b32 s63, s63, 0x80000000")
    e("    v_mov_b32 v10, s62")
    e("    v_mov_b32 v11, s63")
    e("    s_mov_b64 exec, 1")
    e(f"    buffer_store_dwordx2 v[10:11], v8, s[{sDBG}:{sDBG+3}], 0 offen sc1")
    e("    s_mov_b64 exec, -1")
    e("L_nononce:")
    e("    v_lshlrev_b32 v5, 4, v1")
    e("    s_barrier")
    e("    s_mov_b32 s64, 0")
    e("L_poll0:")
    e(f"    buffer_load_dwordx2 v[16:17], v8, s[{sDBG}:{sDBG+3}], 0 offen sc1")
    e("    s_waitcnt vmcnt(0)")
    e("    v_cmp_eq_u32 s[74:75], 0, v17")
    spin_tail("L_poll0", 4)
    e("    s_barrier                          ; A")
    for p in range(32):
        e(f"    ds_read_b128 v[{20+4*p}:{23+4*p}], v5 offset:{L_QPART + p*1024}")
    e("    s_waitcnt lgkmcnt(0)")
    for st in (16, 8, 4, 2, 1):
        for p in range(st):
            for ee in range(4):
                e(f"    v_add_f32 v{20+4*p+ee}, v{20+4*p+ee}, v{20+4*(p+st)+ee}")
    e("    v_mov_b32 v24, v22")
    e("    v_mov_b32 v25, v23")
    e("    v_mov_b32 v22, v16")
    e("    v_mov_b32 v23, v17")
    e("    v_mov_b32 v26, v16")
    e("    v_mov_b32 v27, v17")
    e("    s_lshl_b32 s60, s52, 3")
    e("    s_add_u32 s60, s60, s53")
    e("    s_lshl_b32 s60, s60, 11")
    e("    v_lshl_add_u32 v6, v1, 5, s60")
    e(f"    buffer_store_dwordx4 v[20:23], v6, s[{sWS}:{sWS+3}], 0 offen sc1")
    e(f"    buffer_store_dwordx4 v[24:27], v6, s[{sWS}:{sWS+3}], 0 offen offset:16 sc1")
    e(f"    ds_write_b64 v8, v[16:17] offset:{L_TAG}")
    stamp(10)
    e("    s_lshl_b32 s60, s52, 14")
    e("    s_lshl_b32 s61, s54, 10")
    e("    s_add_u32 s60, s60, s61")
    e("    v_lshl_add_u32 v6, v1, 4, s60")
    e("    v_lshl_add_u32 v7, v1, 11, s60")
    light_poll("L_lp1", 7, 8, 16, 17, 70)
    e("    s_mov_b32 s64, 0")
    e("L_poll1:")
    for jj in range(8):
        e(f"    s_mov_b32 s61, {(jj//2)*4096}")
        e(f"    buffer_load_dwordx4 v[{32+4*jj}:{35+4*jj}], v6, s[{sWS}:{sWS+3}], s61 offen offset:{(jj%2)*2048} sc1")
    e("    s_waitcnt vmcnt(0)")
    tagcheck([32 + 4 * jj for jj in range(8)], 16, 17, 70)
    spin_tail("L_poll1")
    stamp(11)
    for st in (4, 2, 1):
        for p in range(st):
            e(f"    v_add_f32 v{32+4*p}, v{32+4*p}, v{32+4*(p+st)}")
            e(f"    v_add_f32 v{33+4*p}, v{33+4*p}, v{33+4*(p+st)}")
    e("    v_cvt_pk_bf16_f32 v20, v32, v33")
    e("    v_lshlrev_b32 v6, 2, v1")
    e(f"    ds_write_b32 v6, v20 offset:{L_QBF}")
    e("    s_waitcnt lgkmcnt(0)")
    e("    s_barrier                          ; B")
    stamp(12)
    dump_stamps([10, 11, 12])
    e("L_end:")
    e("    s_endpgm")
    e('.section .rodata,"a"')
    e(".p2align 6")
    e(f".amdhsa_kernel {NAME}")
    e(f"  .amdhsa_next_free_vgpr {NVGPR}")
    e("  .amdhsa_next_free_sgpr 102")
    e(f"  .amdhsa_accum_offset {NVGPR}")
    e("  .amdhsa_group_segment_fixed_size 0")
    e("  .amdhsa_kernarg_size 64")
    e("  .amdhsa_user_sgpr_count 2")
    e("  .amdhsa_user_sgpr_kernarg_segment_ptr 1")
    e("  .amdhsa_system_sgpr_workgroup_id_x 1")
    e(".end_amdhsa_kernel")

gen()
path = sys.argv[1] if len(sys.argv) > 1 else "standalone__sliding_block_cached__decode.s"
open(path, "w").write("\n".join(out) + "\n")
print("wrote", path, len(out), "lines")
```

```python
import sys, os, struct

NAME = "standalone__sliding_block_cached__decode_kernel"
WS_QP = 0
WS_OP = 512 * 1024
WS_YP = 1024 * 1024
WS_BYTES = 1536 * 1024
WS_ST = 2 * 1024 * 1024

L_QBF = 0
L_WMAX = 256
L_TAG = 320
L_OFIN = 512
L_OPART = 2560
OPART_STRIDE = 528
L_YPART = 19456
L_QPART = 2560
LDS_BYTES = 19456 + 20480 + 1024

SPIN_MAX = 200000
STAMPS = int(os.environ.get("STAMPS", "0"))
NT = os.environ.get("NT", "nt")
D = int(os.environ.get("D", "2"))
D0 = int(os.environ.get("D0", "4"))
BURST = int(os.environ.get("BURST", "12"))
if STAMPS:
    WS_BYTES = 3 * 1024 * 1024

out = []
def e(s=""):
    out.append(s)

sK, sV, sWQ, sWO, sX, sWS, sOUT, sDBG = 20, 24, 28, 32, 36, 40, 44, 48

def stamp(k):
    if STAMPS:
        e(f"    s_memrealtime s[{76+2*k}:{77+2*k}]")
def dump_stamps(ks):
    if not STAMPS:
        return
    if STAMPS == 2:
        e("    s_waitcnt lgkmcnt(0)")
        e("    s_cmp_lg_u32 s2, 0")
        e("    s_cbranch_scc1 L_end")
        e("    s_mov_b64 exec, 1")
        e("    v_mov_b32 v5, 0")
        for k in ks:
            e(f"    s_sub_u32 s60, s{76+2*k}, s76")
            e(f"    v_mov_b32 v6, s60")
            e(f"    buffer_store_dword v6, v5, s[{sDBG}:{sDBG+3}], 0 offen offset:{8+4*k}")
            e("    s_nop 1")
        return
    e("    s_waitcnt lgkmcnt(0)")
    e("    s_mov_b64 exec, 1")
    e("    s_lshl_b32 s60, s2, 7")
    e(f"    s_add_u32 s60, s60, {WS_ST}")
    e("    v_mov_b32 v5, s60")
    for k in ks:
        e(f"    v_mov_b32 v6, s{76+2*k}")
        e(f"    v_mov_b32 v7, s{77+2*k}")
        e(f"    buffer_store_dwordx2 v[6:7], v5, s[{sWS}:{sWS+3}], 0 offen offset:{8*k}")
        e("    s_nop 1")

def srd(d, p, nbytes):
    e(f"    s_mov_b32 s{d}, s{p}")
    e(f"    s_and_b32 s{d+1}, s{p+1}, 0xffff")
    e(f"    s_mov_b32 s{d+2}, {nbytes:#x}")
    e(f"    s_mov_b32 s{d+3}, 0x00020000")

vK = 16; vV = 48; vWO = 80; vA = 96; vS = 112; vQ = 120; vT = 124
vWQ = 128
vX = 140
vXH = 146
NVGPR = 168
vTAG = 152

queue = []
def issued(tag):
    queue.append(tag)
def wait_for(tag):
    n = len(queue) - 1 - queue.index(tag)
    e(f"    s_waitcnt vmcnt({n})")

def issue_stream(tag):
    kind, i = tag
    if kind == "k":
        e(f"    buffer_load_dwordx4 v[{vK+4*i}:{vK+4*i+3}], v{11 if i<4 else 12}, s[{sK}:{sK+3}], 0 offen offset:{(i%4)*1024} {NT}")
    elif kind == "v":
        e(f"    buffer_load_dwordx4 v[{vV+4*i}:{vV+4*i+3}], v{11 if i<4 else 12}, s[{sV}:{sV+3}], 0 offen offset:{(i%4)*1024} {NT}")
    else:
        e("    s_mov_b64 exec, s[70:71]")
        e(f"    buffer_load_dwordx4 v[{vWO+4*i}:{vWO+4*i+3}], v15, s[{sWO}:{sWO+3}], 0 offen offset:{i*1280} {NT}")
        e("    s_mov_b64 exec, -1")
    issued(tag)

def tagcheck(granules, tl, th, tmp):
    first = True
    for g in granules:
        if first:
            e(f"    v_xor_b32 v{tmp}, v{g+2}, v{tl}")
            e(f"    v_xor_b32 v{tmp+1}, v{g+3}, v{th}")
            first = False
        else:
            e(f"    v_xor_b32 v{tmp+2}, v{g+2}, v{tl}")
            e(f"    v_xor_b32 v{tmp+3}, v{g+3}, v{th}")
            e(f"    v_or3_b32 v{tmp}, v{tmp}, v{tmp+2}, v{tmp+3}")
    e(f"    v_or_b32 v{tmp}, v{tmp}, v{tmp+1}")
    e(f"    v_cmp_ne_u32 s[74:75], 0, v{tmp}")

def spin_tail(lbl, slp=1):
    e("    s_add_u32 s64, s64, 1")
    e("    s_cmp_eq_u64 s[74:75], 0")
    e(f"    s_cbranch_scc1 {lbl}_done")
    e(f"    s_cmp_ge_u32 s64, {SPIN_MAX}")
    e(f"    s_cbranch_scc1 {lbl}_done")
    e(f"    s_sleep {slp}")
    e(f"    s_branch {lbl}")
    e(f"{lbl}_done:")

def light_poll(lbl, vaddr, nl, tl, th, tmp, slp=1):
    e(f"    s_mov_b64 s[72:73], exec")
    if nl <= 32:
        e(f"    s_mov_b64 exec, {(1<<nl)-1:#x}")
    e("    s_mov_b32 s64, 0")
    e(f"{lbl}:")
    e(f"    buffer_load_dwordx2 v[{tmp}:{tmp+1}], v{vaddr}, s[{sWS}:{sWS+3}], 0 offen offset:8 sc1")
    e("    s_waitcnt vmcnt(0)")
    e(f"    v_xor_b32 v{tmp}, v{tmp}, v{tl}")
    e(f"    v_xor_b32 v{tmp+1}, v{tmp+1}, v{th}")
    e(f"    v_or_b32 v{tmp}, v{tmp}, v{tmp+1}")
    e(f"    v_cmp_ne_u32 s[74:75], 0, v{tmp}")
    spin_tail(lbl, slp)
    e(f"    s_mov_b64 exec, s[72:73]")

def gen():
    e("; Fused decode attention: q-proj -> sliding window attention (flash-decoding split) -> out-proj")
    e(f"; @launch grid=(256,1,1) block=(576,1,1) lds={LDS_BYTES}")
    e('.amdgcn_target "amdgcn-amd-amdhsa--gfx950"')
    e(".text")
    e(f".globl {NAME}")
    e(".p2align 8")
    e(f".type {NAME},@function")
    e(f"{NAME}:")
    e("    s_cmp_ge_u32 s2, 256")
    e("    s_cbranch_scc1 L_end")
    e("    s_load_dwordx16 s[4:19], s[0:1], 0")
    e("    v_and_b32 v1, 63, v0              ; lane")
    e("    v_lshrrev_b32 v2, 6, v0")
    e("    s_and_b32 s3, s2, 7")
    e("    v_readfirstlane_b32 s59, v2")
    e("    s_lshr_b32 s57, s2, 3")
    e("    s_lshr_b32 s58, s57, 3")
    e("    s_lshl_b32 s52, s3, 2")
    e("    s_add_u32 s52, s52, s58           ; h")
    e("    s_and_b32 s53, s57, 7             ; j")
    e("    s_lshr_b32 s54, s53, 2            ; b")
    e("    s_and_b32 s55, s53, 3             ; s")
    e("    v_lshrrev_b32 v3, 4, v1           ; g = lane/16")
    e("    v_and_b32 v4, 15, v1              ; c16")
    e("    s_waitcnt lgkmcnt(0)")
    srd(sX, 4, 2 * 640 * 2)
    srd(sK, 6, 2 * 32 * 4096 * 128 * 2)
    srd(sV, 8, 2 * 32 * 4096 * 128 * 2)
    srd(sWQ, 10, 640 * 4096 * 2)
    srd(sWO, 12, 4096 * 640 * 2)
    srd(sOUT, 14, 2 * 640 * 2)
    srd(sDBG, 16, 256)
    srd(sWS, 18, WS_BYTES)
    stamp(0)
    e("    s_cmp_eq_u32 s59, 8")
    e("    s_cbranch_scc1 L_control")
    e("    s_mul_i32 s60, s53, 80")
    e("    s_lshl_b32 s61, s59, 2")
    e("    s_add_u32 s60, s60, s61")
    e("    v_add_u32 v5, s60, v3             ; row_0")
    e("    v_lshlrev_b32 v6, 13, v5")
    e("    v_lshl_add_u32 v6, v4, 4, v6")
    e("    s_lshl_b32 s62, s52, 8")
    e("    v_add_u32 v6, s62, v6")
    e("    v_add_u32 v7, 0x40000, v6")
    e("    s_mov_b32 s63, 0x80000")
    e("    s_cmp_lt_u32 s59, 4")
    e("    s_cselect_b32 s63, s63, 0x7f000000")
    e("    v_add_u32 v8, s63, v6")
    for i in range(3):
        e(f"    buffer_load_dwordx4 v[{vWQ+4*i}:{vWQ+4*i+3}], v{6+i}, s[{sWQ}:{sWQ+3}], 0 offen {NT}")
        issued(("wq", i))
    e("    v_lshlrev_b32 v9, 1, v5")
    e("    s_mov_b32 s63, 128")
    e("    s_cmp_lt_u32 s59, 4")
    e("    s_cselect_b32 s63, s63, 0x7f000000")
    e("    v_add_u32 v10, s63, v9")
    for i in range(3):
        for bb in range(2):
            r = vX + i * 2 + bb
            if i < 2:
                e(f"    buffer_load_ushort v{r}, v9, s[{sX}:{sX+3}], 0 offen offset:{i*64 + bb*1280}")
            else:
                e(f"    buffer_load_ushort v{r}, v10, s[{sX}:{sX+3}], 0 offen offset:{bb*1280}")
            issued(("x", i * 2 + bb))
    e("    s_lshl_b32 s65, s54, 25")
    e("    s_lshl_b32 s66, s52, 20")
    e("    s_add_u32 s65, s65, s66")
    e("    s_lshl_b32 s66, s55, 16")
    e("    s_add_u32 s65, s65, s66")
    e("    s_add_u32 s65, s65, 0xc0000")
    e("    s_lshl_b32 s66, s59, 13")
    e("    s_add_u32 s65, s65, s66")
    e("    v_lshlrev_b32 v11, 4, v1")
    e("    v_add_u32 v11, s65, v11")
    e("    v_add_u32 v12, 0x1000, v11")
    e("    s_barrier")
    seq = [("k", i) for i in range(8)] + [("v", i) for i in range(8)] + [("wo", i) for i in range(4)]
    nxt = 0
    for _ in range(D0):
        issue_stream(seq[nxt]); nxt += 1
    e("    v_mul_u32_u24 v13, 205, v1")
    e("    v_lshrrev_b32 v13, 11, v13        ; rg")
    e("    v_mul_u32_u24 v14, 10, v13")
    e("    v_sub_u32 v14, v1, v14            ; ch")
    e("    s_lshl_b32 s67, s52, 7")
    e("    s_lshl_b32 s68, s59, 4")
    e("    s_add_u32 s67, s67, s68           ; h*128 + 16w")
    e("    v_lshl_add_u32 v15, v13, 2, s67   ; row (i=0)")
    e("    v_mul_u32_u24 v15, 1280, v15")
    e("    v_lshl_add_u32 v15, v14, 4, v15")
    e("    s_mul_i32 s68, s53, 160")
    e("    v_add_u32 v15, s68, v15")
    e("    s_mov_b32 s70, -1")
    e("    s_mov_b32 s71, 0xff               ; lanes < 40")
    for a in range(16):
        e(f"    v_mov_b32 v{vA+a}, 0")
    wait_for(("x", 5))
    stamp(1)
    for i in range(6):
        e(f"    v_lshlrev_b32 v{vXH+i}, 16, v{vX+i}")
    for i in range(3):
        for bb in range(2):
            for ee in range(4):
                e(f"    v_dot2c_f32_bf16 v{vA+bb*8+2*ee}, v{vWQ+4*i+ee}, v{vX+i*2+bb}")
                e(f"    v_dot2c_f32_bf16 v{vA+bb*8+2*ee+1}, v{vWQ+4*i+ee}, v{vXH+i*2+bb}")
    e("    s_lshl_b32 s60, s59, 12")
    e("    v_lshlrev_b32 v5, 10, v3")
    e("    v_lshl_add_u32 v5, v4, 5, v5")
    e("    v_add_u32 v5, s60, v5")
    e(f"    ds_write_b128 v5, v[{vA}:{vA+3}] offset:{L_QPART}")
    e(f"    ds_write_b128 v5, v[{vA+4}:{vA+7}] offset:{L_QPART+16}")
    e(f"    ds_write_b128 v5, v[{vA+8}:{vA+11}] offset:{L_QPART+512}")
    e(f"    ds_write_b128 v5, v[{vA+12}:{vA+15}] offset:{L_QPART+528}")
    e("    s_waitcnt lgkmcnt(0)")
    e("    s_barrier                          ; A")
    stamp(2)
    while nxt < len(seq):
        if nxt < BURST:
            wait_for(seq[nxt - D])
        issue_stream(seq[nxt]); nxt += 1
    e("    s_barrier                          ; B (q ready)")
    stamp(3)
    e("    v_lshlrev_b32 v5, 4, v4")
    e(f"    ds_read_b128 v[{vQ}:{vQ+3}], v5 offset:{L_QBF}")
    e("    v_mov_b32 v5, 0")
    e(f"    ds_read_b64 v[{vTAG}:{vTAG+1}], v5 offset:{L_TAG}")
    for i in range(8):
        e(f"    v_mov_b32 v{vS+i}, 0")
    wait_for(("k", 7))
    e("    s_waitcnt lgkmcnt(0)")
    for i in range(8):
        for ee in range(4):
            e(f"    v_dot2c_f32_bf16 v{vS+i}, v{vK+4*i+ee}, v{vQ+ee}")
    e("    s_nop 2")
    for sh in (8, 4, 2, 1):
        for i in range(8):
            e(f"    v_add_f32_dpp v{vS+i}, v{vS+i}, v{vS+i} row_ror:{sh} row_mask:0xf bank_mask:0xf")
    c = (128 ** -0.5) * 1.4426950408889634
    cbits = struct.unpack("<I", struct.pack("<f", c))[0]
    e(f"    s_mov_b32 s60, {cbits:#x}")
    for i in range(8):
        e(f"    v_mul_f32 v{vS+i}, s60, v{vS+i}")
    e(f"    v_max3_f32 v6, v{vS}, v{vS+1}, v{vS+2}")
    e(f"    v_max3_f32 v7, v{vS+3}, v{vS+4}, v{vS+5}")
    e(f"    v_max3_f32 v6, v6, v{vS+6}, v{vS+7}")
    e("    v_max_f32 v6, v6, v7")
    e("    s_nop 1")
    e("    v_readlane_b32 s60, v6, 0")
    e("    v_readlane_b32 s61, v6, 16")
    e("    v_readlane_b32 s62, v6, 32")
    e("    v_readlane_b32 s63, v6, 48")
    e("    s_nop 1")
    e("    v_mov_b32 v7, s60")
    e("    v_max_f32 v7, s61, v7")
    e("    v_max_f32 v7, s62, v7")
    e("    v_max_f32 v7, s63, v7")
    e("    s_lshl_b32 s60, s59, 2")
    e("    v_mov_b32 v5, s60")
    e(f"    ds_write_b32 v5, v7 offset:{L_WMAX}")
    e("    s_waitcnt lgkmcnt(0)")
    stamp(4)
    e("    s_barrier                          ; M")
    e("    v_mov_b32 v5, 0")
    e(f"    ds_read_b128 v[{vK}:{vK+3}], v5 offset:{L_WMAX}")
    e(f"    ds_read_b128 v[{vK+4}:{vK+7}], v5 offset:{L_WMAX+16}")
    e("    s_waitcnt lgkmcnt(0)")
    e(f"    v_max3_f32 v10, v{vK}, v{vK+1}, v{vK+2}")
    e(f"    v_max3_f32 v6, v{vK+3}, v{vK+4}, v{vK+5}")
    e(f"    v_max3_f32 v10, v10, v{vK+6}, v{vK+7}")
    e("    v_max_f32 v10, v10, v6")
    for i in range(8):
        e(f"    v_sub_f32 v{vS+i}, v{vS+i}, v10")
    for i in range(8):
        e(f"    v_exp_f32 v{vS+i}, v{vS+i}")
    e("    s_nop 0")
    for i in range(0, 8, 2):
        e(f"    v_cvt_pk_bf16_f32 v{vK+16+i//2}, v{vS+i}, v{vS+i+1}")
    vP = vK
    for i in range(0, 8, 2):
        P = vK + 16 + i // 2
        e(f"    v_and_b32 v{vP+2*i}, 0xffff, v{P}")
        e(f"    v_lshlrev_b32 v{vP+2*i+1}, 16, v{P}")
        e(f"    v_lshrrev_b32 v{vP+2*i+2}, 16, v{P}")
        e(f"    v_and_b32 v{vP+2*i+3}, 0xffff0000, v{P}")
    e(f"    v_add_f32 v6, v{vP+1}, v{vP+3}")
    e(f"    v_add_f32 v7, v{vP+5}, v{vP+7}")
    e(f"    v_add_f32 v8, v{vP+9}, v{vP+11}")
    e(f"    v_add_f32 v9, v{vP+13}, v{vP+15}")
    e("    v_add_f32 v6, v6, v7")
    e("    v_add_f32 v8, v8, v9")
    e("    v_add_f32 v9, v6, v8")
    for a in range(8):
        e(f"    v_mov_b32 v{vA+a}, 0")
    for i in range(8):
        wait_for(("v", i))
        if nxt < len(seq):
            issue_stream(seq[nxt]); nxt += 1
        for ee in range(4):
            e(f"    v_dot2c_f32_bf16 v{vA+2*ee}, v{vV+4*i+ee}, v{vP+2*i}")
            e(f"    v_dot2c_f32_bf16 v{vA+2*ee+1}, v{vV+4*i+ee}, v{vP+2*i+1}")
    while nxt < len(seq):
        issue_stream(seq[nxt]); nxt += 1
    e("    s_lshl_b32 s60, s59, 2")
    e("    v_add_u32 v5, s60, v3             ; part")
    e(f"    v_mul_u32_u24 v5, {OPART_STRIDE}, v5")
    e("    v_lshl_add_u32 v6, v4, 5, v5")
    e(f"    ds_write_b128 v6, v[{vA}:{vA+3}] offset:{L_OPART}")
    e(f"    ds_write_b128 v6, v[{vA+4}:{vA+7}] offset:{L_OPART+16}")
    e(f"    ds_write_b32 v5, v9 offset:{L_OPART+512}")
    e("    s_waitcnt lgkmcnt(0)")
    stamp(5)
    e("    s_barrier                          ; C")
    e("    s_cmp_eq_u32 s59, 3")
    e("    s_cbranch_scc1 L_poller")
    e("    s_cmp_ge_u32 s59, 2")
    e("    s_cbranch_scc1 L_wait_o")
    e("    v_lshlrev_b32 v5, 3, v0           ; t*8")
    for p in range(32):
        e(f"    ds_read_b64 v[{vK+2*p}:{vK+2*p+1}], v5 offset:{L_OPART + p*OPART_STRIDE}")
    e("    s_waitcnt lgkmcnt(0)")
    for st in (16, 8, 4, 2, 1):
        for p in range(st):
            e(f"    v_add_f32 v{vK+2*p}, v{vK+2*p}, v{vK+2*(p+st)}")
            e(f"    v_add_f32 v{vK+2*p+1}, v{vK+2*p+1}, v{vK+2*(p+st)+1}")
    e("    v_cmp_eq_u32 vcc, 64, v0")
    e(f"    v_mov_b32 v{vK+2}, v{vTAG}")
    e(f"    v_mov_b32 v{vK+3}, v{vTAG+1}")
    e(f"    v_cndmask_b32 v{vK+1}, v{vK+1}, v10, vcc")
    e("    s_lshl_b32 s60, s54, 5")
    e("    s_add_u32 s60, s60, s52")
    e("    s_lshl_b32 s60, s60, 2")
    e("    s_add_u32 s60, s60, s55")
    e("    s_lshl_b32 s60, s60, 11")
    e(f"    s_add_u32 s60, s60, {WS_OP}")
    e("    v_lshl_add_u32 v5, v0, 4, s60")
    e("    v_cmp_gt_u32 vcc, 65, v0")
    e("    s_and_saveexec_b64 s[72:73], vcc")
    e(f"    buffer_store_dwordx4 v[{vK}:{vK+3}], v5, s[{sWS}:{sWS+3}], 0 offen sc1")
    e("    s_mov_b64 exec, s[72:73]")
    stamp(6)
    e("    s_branch L_wait_o")
    e("L_poller:")
    e("    s_lshl_b32 s60, s52, 13           ; h*4*2048")
    e(f"    s_add_u32 s60, s60, {WS_OP}")
    e("    v_and_b32 v5, 31, v1")
    e("    v_lshl_add_u32 v5, v5, 5, s60")
    e("    v_lshrrev_b32 v6, 5, v1")
    e("    v_lshlrev_b32 v6, 18, v6          ; b*32*4*2048")
    e("    v_add_u32 v5, v5, v6")
    e("    v_add_u32 v6, s60, v6")
    e("    v_add_u32 v7, 0x1000, v5")
    e("    v_add_u32 v8, 0x1000, v6")
    e("    v_lshrrev_b32 v9, 2, v1")
    e("    v_lshlrev_b32 v9, 18, v9")
    e("    v_and_b32 v2, 3, v1")
    e("    v_lshl_add_u32 v9, v2, 11, v9")
    e("    v_add_u32 v9, s60, v9")
    e("    v_add_u32 v9, 0x400, v9")
    light_poll("L_lp2", 9, 8, vTAG, vTAG + 1, vS)
    e("    s_mov_b32 s64, 0")
    e("L_poll2:")
    G = []
    for ss in range(4):
        for hf in range(2):
            r = vK + (ss * 2 + hf) * 4
            e(f"    buffer_load_dwordx4 v[{r}:{r+3}], v{5 if ss<2 else 7}, s[{sWS}:{sWS+3}], 0 offen offset:{(ss%2)*2048+hf*16} sc1")
            G.append(r)
    for ss in range(4):
        r = vK + 32 + ss * 4
        e(f"    buffer_load_dwordx4 v[{r}:{r+3}], v{6 if ss<2 else 8}, s[{sWS}:{sWS+3}], 0 offen offset:{(ss%2)*2048+1024} sc1")
        G.append(r)
    e("    s_waitcnt vmcnt(0)")
    tagcheck(G, vTAG, vTAG + 1, vS)
    spin_tail("L_poll2")
    l = [vK + 32 + 4 * ss for ss in range(4)]
    m = [x + 1 for x in l]
    def oreg(ss, r):
        return vK + (ss * 2 + r // 2) * 4 + (r % 2)
    T = vA
    e(f"    v_max3_f32 v9, v{m[0]}, v{m[1]}, v{m[2]}")
    e(f"    v_max_f32 v9, v9, v{m[3]}")
    for ss in range(4):
        e(f"    v_sub_f32 v{T+ss}, v{m[ss]}, v9")
    for ss in range(4):
        e(f"    v_exp_f32 v{T+ss}, v{T+ss}")
    e("    s_nop 0")
    e(f"    v_mul_f32 v9, v{T}, v{l[0]}")
    for ss in range(1, 4):
        e(f"    v_fmac_f32 v9, v{T+ss}, v{l[ss]}")
    e("    v_rcp_f32 v9, v9")
    for r in range(4):
        e(f"    v_mul_f32 v{T+4+r}, v{T}, v{oreg(0, r)}")
        for ss in range(1, 4):
            e(f"    v_fmac_f32 v{T+4+r}, v{T+ss}, v{oreg(ss, r)}")
    for r in range(4):
        e(f"    v_mul_f32 v{T+4+r}, v{T+4+r}, v9")
    e(f"    v_cvt_pk_bf16_f32 v{T+8}, v{T+4}, v{T+5}")
    e(f"    v_cvt_pk_bf16_f32 v{T+9}, v{T+6}, v{T+7}")
    for p in range(2):
        base = vS + 4 * p
        e(f"    v_and_b32 v{base}, 0xffff, v{T+8+p}")
        e(f"    v_lshlrev_b32 v{base+1}, 16, v{T+8+p}")
        e(f"    v_lshrrev_b32 v{base+2}, 16, v{T+8+p}")
        e(f"    v_and_b32 v{base+3}, 0xffff0000, v{T+8+p}")
    e("    v_lshlrev_b32 v5, 5, v1")
    e(f"    ds_write_b128 v5, v[{vS}:{vS+3}] offset:{L_OFIN}")
    e(f"    ds_write_b128 v5, v[{vS+4}:{vS+7}] offset:{L_OFIN+16}")
    e("    s_waitcnt lgkmcnt(0)")
    e("L_wait_o:")
    e("    s_barrier")
    stamp(7)
    e("    s_lshl_b32 s60, s59, 7            ; 16w*8")
    e("    v_lshl_add_u32 v5, v13, 5, s60")
    e("    s_mov_b64 exec, s[70:71]")
    e(f"    ds_read_b128 v[{vK}:{vK+3}], v5 offset:{L_OFIN}")
    e(f"    ds_read_b128 v[{vK+4}:{vK+7}], v5 offset:{L_OFIN+16}")
    e(f"    ds_read_b128 v[{vK+8}:{vK+11}], v5 offset:{L_OFIN+1024}")
    e(f"    ds_read_b128 v[{vK+12}:{vK+15}], v5 offset:{L_OFIN+1040}")
    for a in range(16):
        e(f"    v_mov_b32 v{vA+a}, 0")
    e("    s_waitcnt vmcnt(0) lgkmcnt(0)")
    for r in range(4):
        for bb in range(2):
            lo = vK + bb * 8 + r * 2
            for ee in range(4):
                e(f"    v_dot2c_f32_bf16 v{vA+bb*8+2*ee}, v{vWO+4*r+ee}, v{lo}")
                e(f"    v_dot2c_f32_bf16 v{vA+bb*8+2*ee+1}, v{vWO+4*r+ee}, v{lo+1}")
    e("    s_lshl_b32 s60, s59, 2")
    e("    v_add_u32 v5, s60, v13")
    e("    v_mul_u32_u24 v5, 640, v5")
    e("    v_lshl_add_u32 v5, v14, 5, v5")
    e(f"    ds_write_b128 v5, v[{vA}:{vA+3}] offset:{L_YPART}")
    e(f"    ds_write_b128 v5, v[{vA+4}:{vA+7}] offset:{L_YPART+16}")
    e(f"    ds_write_b128 v5, v[{vA+8}:{vA+11}] offset:{L_YPART+320}")
    e(f"    ds_write_b128 v5, v[{vA+12}:{vA+15}] offset:{L_YPART+336}")
    e("    s_mov_b64 exec, -1")
    e("    s_waitcnt lgkmcnt(0)")
    e("    s_barrier                          ; D")
    e("    s_cmp_ge_u32 s59, 2")
    e("    s_cbranch_scc1 L_end")
    e("    v_lshlrev_b32 v5, 3, v0           ; t*8")
    for p in range(32):
        e(f"    ds_read_b64 v[{vK+2*p}:{vK+2*p+1}], v5 offset:{L_YPART + p*640}")
    e("    s_waitcnt lgkmcnt(0)")
    for st in (16, 8, 4, 2, 1):
        for p in range(st):
            e(f"    v_add_f32 v{vK+2*p}, v{vK+2*p}, v{vK+2*(p+st)}")
            e(f"    v_add_f32 v{vK+2*p+1}, v{vK+2*p+1}, v{vK+2*(p+st)+1}")
    e(f"    v_mov_b32 v{vK+2}, v{vTAG}")
    e(f"    v_mov_b32 v{vK+3}, v{vTAG+1}")
    e("    s_lshl_b32 s60, s53, 5")
    e("    s_add_u32 s60, s60, s52")
    e("    s_lshl_b32 s60, s60, 11")
    e(f"    s_add_u32 s60, s60, {WS_YP}")
    e("    v_lshl_add_u32 v7, v0, 4, s60")
    e("    v_cmp_gt_u32 vcc, 80, v0")
    e("    s_and_saveexec_b64 s[72:73], vcc")
    e("    s_cbranch_execz L_end")
    e(f"    buffer_store_dwordx4 v[{vK}:{vK+3}], v7, s[{sWS}:{sWS+3}], 0 offen sc1")
    stamp(8)
    e("    s_lshl_b32 s60, s53, 2")
    e("    s_cmp_lg_u32 s60, s52")
    e("    s_cbranch_scc1 L_dump0" if STAMPS else "    s_cbranch_scc1 L_end")
    e("    s_lshl_b32 s60, s53, 16")
    e(f"    s_add_u32 s60, s60, {WS_YP}")
    e("    v_lshl_add_u32 v7, v0, 4, s60")
    e("    s_mov_b64 s[66:67], exec")
    e("    s_mov_b64 exec, -1")
    e("    v_lshl_add_u32 v9, v1, 11, s60")
    light_poll("L_lp3", 9, 32, vTAG, vTAG + 1, 156)
    e("    s_mov_b64 exec, s[66:67]")
    e("    s_mov_b32 s64, 0")
    R0 = 16
    e("L_poll3:")
    for hh in range(32):
        e(f"    s_mov_b32 s61, {(hh//2)*4096}")
        e(f"    buffer_load_dwordx4 v[{R0+4*hh}:{R0+4*hh+3}], v7, s[{sWS}:{sWS+3}], s61 offen offset:{(hh%2)*2048} sc1")
    e("    s_waitcnt vmcnt(0)")
    tagcheck([R0 + 4 * hh for hh in range(32)], vTAG, vTAG + 1, 156)
    spin_tail("L_poll3")
    for st in (16, 8, 4, 2, 1):
        for p in range(st):
            e(f"    v_add_f32 v{R0+4*p}, v{R0+4*p}, v{R0+4*(p+st)}")
            e(f"    v_add_f32 v{R0+4*p+1}, v{R0+4*p+1}, v{R0+4*(p+st)+1}")
    e(f"    v_cvt_pk_bf16_f32 v6, v{R0}, v{R0+1}")
    e("    v_cmp_le_u32 vcc, 40, v0")
    e("    v_mov_b32 v7, 0")
    e("    v_mov_b32 v8, 560")
    e("    v_cndmask_b32 v7, v7, v8, vcc")
    e("    v_lshl_add_u32 v7, v0, 1, v7")
    e("    s_mul_i32 s60, s53, 80")
    e("    v_add_u32 v7, s60, v7")
    e("    v_lshlrev_b32 v7, 1, v7")
    e(f"    buffer_store_dword v6, v7, s[{sOUT}:{sOUT+3}], 0 offen")
    stamp(9)
    if STAMPS:
        e("L_dump0:")
        e("    s_cmp_lg_u32 s59, 0")
        e("    s_cbranch_scc1 L_end")
        dump_stamps(list(range(10)))
    e("    s_branch L_end")
    e("L_control:")
    e("    v_mov_b32 v8, 0")
    e("    s_cmp_lg_u32 s2, 0")
    e("    s_cbranch_scc1 L_nononce")
    e("    s_memrealtime s[62:63]")
    e("    s_waitcnt lgkmcnt(0)")
    e("    s_or_b32 s63, s63, 0x80000000")
    e("    v_mov_b32 v10, s62")
    e("    v_mov_b32 v11, s63")
    e("    s_mov_b64 exec, 1")
    e(f"    buffer_store_dwordx2 v[10:11], v8, s[{sDBG}:{sDBG+3}], 0 offen sc1")
    e("    s_mov_b64 exec, -1")
    e("L_nononce:")
    e("    v_lshlrev_b32 v5, 4, v1")
    e("    s_barrier")
    e("    s_mov_b32 s64, 0")
    e("L_poll0:")
    e(f"    buffer_load_dwordx2 v[16:17], v8, s[{sDBG}:{sDBG+3}], 0 offen sc1")
    e("    s_waitcnt vmcnt(0)")
    e("    v_cmp_eq_u32 s[74:75], 0, v17")
    spin_tail("L_poll0", 4)
    e("    s_barrier                          ; A")
    for p in range(32):
        e(f"    ds_read_b128 v[{20+4*p}:{23+4*p}], v5 offset:{L_QPART + p*1024}")
    e("    s_waitcnt lgkmcnt(0)")
    for st in (16, 8, 4, 2, 1):
        for p in range(st):
            for ee in range(4):
                e(f"    v_add_f32 v{20+4*p+ee}, v{20+4*p+ee}, v{20+4*(p+st)+ee}")
    e("    v_mov_b32 v24, v22")
    e("    v_mov_b32 v25, v23")
    e("    v_mov_b32 v22, v16")
    e("    v_mov_b32 v23, v17")
    e("    v_mov_b32 v26, v16")
    e("    v_mov_b32 v27, v17")
    e("    s_lshl_b32 s60, s52, 3")
    e("    s_add_u32 s60, s60, s53")
    e("    s_lshl_b32 s60, s60, 11")
    e("    v_lshl_add_u32 v6, v1, 5, s60")
    e(f"    buffer_store_dwordx4 v[20:23], v6, s[{sWS}:{sWS+3}], 0 offen sc1")
    e(f"    buffer_store_dwordx4 v[24:27], v6, s[{sWS}:{sWS+3}], 0 offen offset:16 sc1")
    e(f"    ds_write_b64 v8, v[16:17] offset:{L_TAG}")
    stamp(10)
    e("    s_lshl_b32 s60, s52, 14")
    e("    s_lshl_b32 s61, s54, 10")
    e("    s_add_u32 s60, s60, s61")
    e("    v_lshl_add_u32 v6, v1, 4, s60")
    e("    v_lshl_add_u32 v7, v1, 11, s60")
    light_poll("L_lp1", 7, 8, 16, 17, 70)
    e("    s_mov_b32 s64, 0")
    e("L_poll1:")
    for jj in range(8):
        e(f"    s_mov_b32 s61, {(jj//2)*4096}")
        e(f"    buffer_load_dwordx4 v[{32+4*jj}:{35+4*jj}], v6, s[{sWS}:{sWS+3}], s61 offen offset:{(jj%2)*2048} sc1")
    e("    s_waitcnt vmcnt(0)")
    tagcheck([32 + 4 * jj for jj in range(8)], 16, 17, 70)
    spin_tail("L_poll1")
    stamp(11)
    for st in (4, 2, 1):
        for p in range(st):
            e(f"    v_add_f32 v{32+4*p}, v{32+4*p}, v{32+4*(p+st)}")
            e(f"    v_add_f32 v{33+4*p}, v{33+4*p}, v{33+4*(p+st)}")
    e("    v_cvt_pk_bf16_f32 v20, v32, v33")
    e("    v_lshlrev_b32 v6, 2, v1")
    e(f"    ds_write_b32 v6, v20 offset:{L_QBF}")
    e("    s_waitcnt lgkmcnt(0)")
    e("    s_barrier                          ; B")
    stamp(12)
    dump_stamps([10, 11, 12])
    e("L_end:")
    e("    s_endpgm")
    e('.section .rodata,"a"')
    e(".p2align 6")
    e(f".amdhsa_kernel {NAME}")
    e(f"  .amdhsa_next_free_vgpr {NVGPR}")
    e("  .amdhsa_next_free_sgpr 102")
    e(f"  .amdhsa_accum_offset {NVGPR}")
    e("  .amdhsa_group_segment_fixed_size 0")
    e("  .amdhsa_kernarg_size 64")
    e("  .amdhsa_user_sgpr_count 2")
    e("  .amdhsa_user_sgpr_kernarg_segment_ptr 1")
    e("  .amdhsa_system_sgpr_workgroup_id_x 1")
    e(".end_amdhsa_kernel")

gen()
path = sys.argv[1] if len(sys.argv) > 1 else "standalone__sliding_block_cached__decode.s"
open(path, "w").write("\n".join(out) + "\n")
print("wrote", path, len(out), "lines")
```

```python
import sys, os, struct

NAME = "standalone__sliding_block_cached__decode_kernel"
WS_QP = 0
WS_OP = 512 * 1024
WS_YP = 1024 * 1024
WS_BYTES = 1536 * 1024
WS_ST = 2 * 1024 * 1024

L_QBF = 0
L_WMAX = 256
L_TAG = 320
L_QFLAG = 336
L_OFIN = 512
L_OPART = 2560
L_LSUM = 6656
L_YPART = 7168
L_QPART = 2560
LDS_BYTES = 2560 + 16384

SPIN_MAX = 200000
STAMPS = int(os.environ.get("STAMPS", "0"))
NT = os.environ.get("NT", "nt")
D = int(os.environ.get("D", "2"))
D0 = int(os.environ.get("D0", "4"))
BURST = int(os.environ.get("BURST", "12"))
if STAMPS:
    WS_BYTES = 3 * 1024 * 1024

out = []
def e(s=""):
    out.append(s)

sK, sV, sWQ, sWO, sX, sWS, sOUT, sDBG = 20, 24, 28, 32, 36, 40, 44, 48

def stamp(k):
    if STAMPS:
        e(f"    s_memrealtime s[{76+2*k}:{77+2*k}]")
def dump_stamps(ks):
    if not STAMPS:
        return
    if STAMPS == 2:
        e("    s_waitcnt lgkmcnt(0)")
        e("    s_cmp_lg_u32 s2, 0")
        e("    s_cbranch_scc1 L_end")
        e("    s_mov_b64 exec, 1")
        e("    v_mov_b32 v5, 0")
        for k in ks:
            e(f"    s_sub_u32 s60, s{76+2*k}, s76")
            e(f"    v_mov_b32 v6, s60")
            e(f"    buffer_store_dword v6, v5, s[{sDBG}:{sDBG+3}], 0 offen offset:{8+4*k}")
            e("    s_nop 1")
        return
    e("    s_waitcnt lgkmcnt(0)")
    e("    s_mov_b64 exec, 1")
    e("    s_lshl_b32 s60, s2, 7")
    e(f"    s_add_u32 s60, s60, {WS_ST}")
    e("    v_mov_b32 v5, s60")
    for k in ks:
        e(f"    v_mov_b32 v6, s{76+2*k}")
        e(f"    v_mov_b32 v7, s{77+2*k}")
        e(f"    buffer_store_dwordx2 v[6:7], v5, s[{sWS}:{sWS+3}], 0 offen offset:{8*k}")
        e("    s_nop 1")

def srd(d, p, nbytes):
    e(f"    s_mov_b32 s{d}, s{p}")
    e(f"    s_and_b32 s{d+1}, s{p+1}, 0xffff")
    e(f"    s_mov_b32 s{d+2}, {nbytes:#x}")
    e(f"    s_mov_b32 s{d+3}, 0x00020000")

vK = 16; vV = 48; vWO = 80; vA = 96; vS = 112; vQ = 120; vT = 124
vWQ = 128
vX = 140
vXH = 146
NVGPR = 168
XS = 88
vTAG = 152

queue = []
def issued(tag):
    queue.append(tag)
def wait_for(tag):
    n = len(queue) - 1 - queue.index(tag)
    e(f"    s_waitcnt vmcnt({n})")

def issue_stream(tag):
    kind, i = tag
    if kind == "k":
        e(f"    buffer_load_dwordx4 v[{vK+4*i}:{vK+4*i+3}], v{11 if i<4 else 12}, s[{sK}:{sK+3}], 0 offen offset:{(i%4)*1024} {NT}")
    elif kind == "v":
        e(f"    buffer_load_dwordx4 v[{vV+4*i}:{vV+4*i+3}], v{11 if i<4 else 12}, s[{sV}:{sV+3}], 0 offen offset:{(i%4)*1024} {NT}")
    else:
        e("    s_mov_b64 exec, s[70:71]")
        e(f"    buffer_load_dwordx4 v[{vWO+4*i}:{vWO+4*i+3}], v15, s[{sWO}:{sWO+3}], 0 offen offset:{i*1280} {NT}")
        e("    s_mov_b64 exec, -1")
    issued(tag)

def tagcheck(granules, tl, th, tmp):
    first = True
    for g in granules:
        if first:
            e(f"    v_xor_b32 v{tmp}, v{g+2}, v{tl}")
            e(f"    v_xor_b32 v{tmp+1}, v{g+3}, v{th}")
            first = False
        else:
            e(f"    v_xor_b32 v{tmp+2}, v{g+2}, v{tl}")
            e(f"    v_xor_b32 v{tmp+3}, v{g+3}, v{th}")
            e(f"    v_or3_b32 v{tmp}, v{tmp}, v{tmp+2}, v{tmp+3}")
    e(f"    v_or_b32 v{tmp}, v{tmp}, v{tmp+1}")
    e(f"    v_cmp_ne_u32 s[74:75], 0, v{tmp}")

def spin_tail(lbl, slp=1):
    e("    s_add_u32 s64, s64, 1")
    e("    s_cmp_eq_u64 s[74:75], 0")
    e(f"    s_cbranch_scc1 {lbl}_done")
    e(f"    s_cmp_ge_u32 s64, {SPIN_MAX}")
    e(f"    s_cbranch_scc1 {lbl}_done")
    e(f"    s_sleep {slp}")
    e(f"    s_branch {lbl}")
    e(f"{lbl}_done:")

def light_poll(lbl, vaddr, nl, tl, th, tmp, slp=1):
    e(f"    s_mov_b64 s[72:73], exec")
    if nl <= 32:
        e(f"    s_mov_b64 exec, {(1<<nl)-1:#x}")
    e("    s_mov_b32 s64, 0")
    e(f"{lbl}:")
    e(f"    buffer_load_dwordx2 v[{tmp}:{tmp+1}], v{vaddr}, s[{sWS}:{sWS+3}], 0 offen offset:8 sc1")
    e("    s_waitcnt vmcnt(0)")
    e(f"    v_xor_b32 v{tmp}, v{tmp}, v{tl}")
    e(f"    v_xor_b32 v{tmp+1}, v{tmp+1}, v{th}")
    e(f"    v_or_b32 v{tmp}, v{tmp}, v{tmp+1}")
    e(f"    v_cmp_ne_u32 s[74:75], 0, v{tmp}")
    spin_tail(lbl, slp)
    e(f"    s_mov_b64 exec, s[72:73]")

def gen():
    e("; Fused decode attention: q-proj -> sliding window attention (flash-decoding split) -> out-proj")
    e(f"; @launch grid=(256,1,1) block=(576,1,1) lds={LDS_BYTES}")
    e('.amdgcn_target "amdgcn-amd-amdhsa--gfx950"')
    e(".text")
    e(f".globl {NAME}")
    e(".p2align 8")
    e(f".type {NAME},@function")
    e(f"{NAME}:")
    e("    s_cmp_ge_u32 s2, 256")
    e("    s_cbranch_scc1 L_end")
    e("    s_load_dwordx16 s[4:19], s[0:1], 0")
    e("    v_and_b32 v1, 63, v0              ; lane")
    e("    v_lshrrev_b32 v2, 6, v0")
    e("    s_and_b32 s3, s2, 7")
    e("    v_readfirstlane_b32 s59, v2")
    e("    s_lshr_b32 s57, s2, 3")
    e("    s_lshr_b32 s58, s57, 3")
    e("    s_lshl_b32 s52, s3, 2")
    e("    s_add_u32 s52, s52, s58           ; h")
    e("    s_and_b32 s53, s57, 7             ; j")
    e("    s_lshr_b32 s54, s53, 2            ; b")
    e("    s_and_b32 s55, s53, 3             ; s")
    e("    v_lshrrev_b32 v3, 4, v1           ; g = lane/16")
    e("    v_and_b32 v4, 15, v1              ; c16")
    e("    s_waitcnt lgkmcnt(0)")
    srd(sX, 4, 2 * 640 * 2)
    srd(sK, 6, 2 * 32 * 4096 * 128 * 2)
    srd(sV, 8, 2 * 32 * 4096 * 128 * 2)
    srd(sWQ, 10, 640 * 4096 * 2)
    srd(sWO, 12, 4096 * 640 * 2)
    srd(sOUT, 14, 2 * 640 * 2)
    srd(sDBG, 16, 256)
    srd(sWS, 18, WS_BYTES)
    stamp(0)
    e("    s_cmp_eq_u32 s59, 8")
    e("    s_cbranch_scc1 L_control")
    e("    s_mul_i32 s60, s53, 80")
    e("    s_lshl_b32 s61, s59, 2")
    e("    s_add_u32 s60, s60, s61")
    e("    v_add_u32 v5, s60, v3             ; row_0")
    e("    v_lshlrev_b32 v6, 13, v5")
    e("    v_lshl_add_u32 v6, v4, 4, v6")
    e("    s_lshl_b32 s62, s52, 8")
    e("    v_add_u32 v6, s62, v6")
    e("    v_add_u32 v7, 0x40000, v6")
    e("    s_mov_b32 s63, 0x80000")
    e("    s_cmp_lt_u32 s59, 4")
    e("    s_cselect_b32 s63, s63, 0x7f000000")
    e("    v_add_u32 v8, s63, v6")
    for i in range(3):
        e(f"    buffer_load_dwordx4 v[{vWQ+4*i}:{vWQ+4*i+3}], v{6+i}, s[{sWQ}:{sWQ+3}], 0 offen {NT}")
        issued(("wq", i))
    e("    s_lshl_b32 s61, s60, 1")
    for i in range(3):
        for bb in range(2):
            d = XS + 2 * (i * 2 + bb)
            if i < 2:
                e(f"    s_add_u32 s62, s61, {i*64 + bb*1280}")
            else:
                e(f"    s_add_u32 s62, s61, {128 + bb*1280}")
                e("    s_cmp_lt_u32 s59, 4")
                e("    s_cselect_b32 s62, s62, s61")
            e(f"    s_load_dwordx2 s[{d}:{d+1}], s[4:5], s62")
    e("    s_lshl_b32 s65, s54, 25")
    e("    s_lshl_b32 s66, s52, 20")
    e("    s_add_u32 s65, s65, s66")
    e("    s_lshl_b32 s66, s55, 16")
    e("    s_add_u32 s65, s65, s66")
    e("    s_add_u32 s65, s65, 0xc0000")
    e("    s_lshl_b32 s66, s59, 13")
    e("    s_add_u32 s65, s65, s66")
    e("    v_lshlrev_b32 v11, 4, v1")
    e("    v_add_u32 v11, s65, v11")
    e("    v_add_u32 v12, 0x1000, v11")
    e("    s_barrier")
    seq = [("k", i) for i in range(8)] + [("v", i) for i in range(8)] + [("wo", i) for i in range(4)]
    nxt = 0
    for _ in range(D0):
        issue_stream(seq[nxt]); nxt += 1
    e("    v_mov_b32 v13, v3")
    e("    v_mov_b32 v14, v4                 ; ch = lane%16 (active < 10)")
    e("    s_lshl_b32 s67, s52, 7")
    e("    s_lshl_b32 s68, s59, 4")
    e("    s_add_u32 s67, s67, s68           ; h*128 + 16w")
    e("    v_lshl_add_u32 v15, v13, 2, s67   ; row (i=0)")
    e("    v_mul_u32_u24 v15, 1280, v15")
    e("    v_lshl_add_u32 v15, v14, 4, v15")
    e("    s_mul_i32 s68, s53, 160")
    e("    v_add_u32 v15, s68, v15")
    e("    s_mov_b32 s70, 0x03ff03ff")
    e("    s_mov_b32 s71, 0x03ff03ff         ; lanes with lane%16 < 10")
    for a in range(16):
        e(f"    v_mov_b32 v{vA+a}, 0")
    e("    v_and_b32 v6, 1, v3")
    e("    v_lshlrev_b32 v6, 4, v6           ; 16*(g&1)")
    e("    v_cmp_gt_u32 vcc, 2, v3           ; g < 2")
    e("    s_waitcnt lgkmcnt(0)")
    e("    s_cmp_lt_u32 s59, 4")
    for k in (4, 5):
        e(f"    s_cselect_b32 s{XS+2*k}, s{XS+2*k}, 0")
        e(f"    s_cselect_b32 s{XS+2*k+1}, s{XS+2*k+1}, 0")
    for k in range(6):
        e(f"    v_mov_b32 v7, s{XS+2*k+1}")
        e(f"    v_mov_b32 v8, s{XS+2*k}")
        e(f"    v_cndmask_b32 v7, v7, v8, vcc")
        e(f"    v_lshrrev_b32 v7, v6, v7")
        e(f"    v_and_b32 v{vX+k}, 0xffff, v7")
        e(f"    v_lshlrev_b32 v{vXH+k}, 16, v7")
    wait_for(("wq", 2))
    stamp(1)
    for i in range(3):
        for bb in range(2):
            for ee in range(4):
                e(f"    v_dot2c_f32_bf16 v{vA+bb*8+2*ee}, v{vWQ+4*i+ee}, v{vX+i*2+bb}")
                e(f"    v_dot2c_f32_bf16 v{vA+bb*8+2*ee+1}, v{vWQ+4*i+ee}, v{vXH+i*2+bb}")
    e("    s_nop 2")
    for ee in range(8):
        e(f"    v_permlane32_swap_b32 v{vA+ee}, v{vA+ee+8}")
    for ee in range(8):
        e(f"    v_add_f32 v{vA+ee}, v{vA+ee}, v{vA+ee+8}")
    for ee in range(4):
        e(f"    v_permlane16_swap_b32 v{vA+ee}, v{vA+ee+4}")
    for ee in range(4):
        e(f"    v_add_f32 v{vA+ee}, v{vA+ee}, v{vA+ee+4}")
    e("    v_lshrrev_b32 v5, 1, v3")
    e("    v_lshlrev_b32 v5, 9, v5")
    e("    v_lshl_add_u32 v5, v4, 5, v5")
    e("    v_and_b32 v6, 1, v3")
    e("    v_lshl_add_u32 v5, v6, 4, v5")
    e("    s_lshl_b32 s60, s59, 10")
    e("    v_add_u32 v5, s60, v5")
    e(f"    ds_write_b128 v5, v[{vA}:{vA+3}] offset:{L_QPART}")
    e("    s_waitcnt lgkmcnt(0)")
    e("    s_barrier                          ; A")
    stamp(2)
    e("    v_mov_b32 v5, 0")
    start = nxt
    saved = list(queue)
    while nxt < len(seq):
        e(f"    ds_read_b32 v6, v5 offset:{L_QFLAG}")
        wait_for(seq[nxt - D])
        e("    s_waitcnt lgkmcnt(0)")
        e("    v_readfirstlane_b32 s60, v6")
        e("    s_cmp_lg_u32 s60, 0")
        e(f"    s_cbranch_scc1 L_burst{nxt}")
        issue_stream(seq[nxt]); nxt += 1
    e("    s_branch L_issued")
    queue[:] = saved
    for k in range(start, len(seq)):
        e(f"L_burst{k}:")
        issue_stream(seq[k])
    e("L_issued:")
    e("    s_barrier                          ; B (q ready)")
    stamp(3)
    e("    v_lshlrev_b32 v5, 4, v4")
    e(f"    ds_read_b128 v[{vQ}:{vQ+3}], v5 offset:{L_QBF}")
    e("    v_mov_b32 v5, 0")
    e(f"    ds_read_b64 v[{vTAG}:{vTAG+1}], v5 offset:{L_TAG}")
    for i in range(8):
        e(f"    v_mov_b32 v{vS+i}, 0")
    wait_for(("k", 7))
    e("    s_waitcnt lgkmcnt(0)")
    for i in range(8):
        for ee in range(4):
            e(f"    v_dot2c_f32_bf16 v{vS+i}, v{vK+4*i+ee}, v{vQ+ee}")
    e("    s_nop 2")
    for sh in (8, 4, 2, 1):
        for i in range(8):
            e(f"    v_add_f32_dpp v{vS+i}, v{vS+i}, v{vS+i} row_ror:{sh} row_mask:0xf bank_mask:0xf")
    c = (128 ** -0.5) * 1.4426950408889634
    cbits = struct.unpack("<I", struct.pack("<f", c))[0]
    e(f"    s_mov_b32 s60, {cbits:#x}")
    for i in range(8):
        e(f"    v_mul_f32 v{vS+i}, s60, v{vS+i}")
    e(f"    v_max3_f32 v6, v{vS}, v{vS+1}, v{vS+2}")
    e(f"    v_max3_f32 v7, v{vS+3}, v{vS+4}, v{vS+5}")
    e(f"    v_max3_f32 v6, v6, v{vS+6}, v{vS+7}")
    e("    v_max_f32 v6, v6, v7")
    e("    s_nop 1")
    e("    v_readlane_b32 s60, v6, 0")
    e("    v_readlane_b32 s61, v6, 16")
    e("    v_readlane_b32 s62, v6, 32")
    e("    v_readlane_b32 s63, v6, 48")
    e("    s_nop 1")
    e("    v_mov_b32 v7, s60")
    e("    v_max_f32 v7, s61, v7")
    e("    v_max_f32 v7, s62, v7")
    e("    v_max_f32 v7, s63, v7")
    e("    s_lshl_b32 s60, s59, 2")
    e("    v_mov_b32 v5, s60")
    e(f"    ds_write_b32 v5, v7 offset:{L_WMAX}")
    e("    s_waitcnt lgkmcnt(0)")
    stamp(4)
    e("    s_barrier                          ; M")
    e("    v_mov_b32 v5, 0")
    e(f"    ds_read_b128 v[{vK}:{vK+3}], v5 offset:{L_WMAX}")
    e(f"    ds_read_b128 v[{vK+4}:{vK+7}], v5 offset:{L_WMAX+16}")
    e("    s_waitcnt lgkmcnt(0)")
    e(f"    v_max3_f32 v10, v{vK}, v{vK+1}, v{vK+2}")
    e(f"    v_max3_f32 v6, v{vK+3}, v{vK+4}, v{vK+5}")
    e(f"    v_max3_f32 v10, v10, v{vK+6}, v{vK+7}")
    e("    v_max_f32 v10, v10, v6")
    for i in range(8):
        e(f"    v_sub_f32 v{vS+i}, v{vS+i}, v10")
    for i in range(8):
        e(f"    v_exp_f32 v{vS+i}, v{vS+i}")
    e("    s_nop 0")
    for i in range(0, 8, 2):
        e(f"    v_cvt_pk_bf16_f32 v{vK+16+i//2}, v{vS+i}, v{vS+i+1}")
    vP = vK
    for i in range(0, 8, 2):
        P = vK + 16 + i // 2
        e(f"    v_and_b32 v{vP+2*i}, 0xffff, v{P}")
        e(f"    v_lshlrev_b32 v{vP+2*i+1}, 16, v{P}")
        e(f"    v_lshrrev_b32 v{vP+2*i+2}, 16, v{P}")
        e(f"    v_and_b32 v{vP+2*i+3}, 0xffff0000, v{P}")
    e(f"    v_add_f32 v6, v{vP+1}, v{vP+3}")
    e(f"    v_add_f32 v7, v{vP+5}, v{vP+7}")
    e(f"    v_add_f32 v8, v{vP+9}, v{vP+11}")
    e(f"    v_add_f32 v9, v{vP+13}, v{vP+15}")
    e("    v_add_f32 v6, v6, v7")
    e("    v_add_f32 v8, v8, v9")
    e("    v_add_f32 v9, v6, v8")
    e("    s_nop 1")
    e("    v_readlane_b32 s60, v9, 0")
    e("    v_readlane_b32 s61, v9, 16")
    e("    v_readlane_b32 s62, v9, 32")
    e("    v_readlane_b32 s63, v9, 48")
    e("    s_nop 1")
    e("    v_mov_b32 v9, s60")
    e("    v_add_f32 v9, s61, v9")
    e("    v_add_f32 v9, s62, v9")
    e("    v_add_f32 v9, s63, v9             ; wave l")
    e("    s_lshl_b32 s60, s59, 2")
    e("    v_mov_b32 v5, s60")
    e(f"    ds_write_b32 v5, v9 offset:{L_LSUM}")
    for a in range(8):
        e(f"    v_mov_b32 v{vA+a}, 0")
    for i in range(8):
        wait_for(("v", i))
        if nxt < len(seq):
            issue_stream(seq[nxt]); nxt += 1
        for ee in range(4):
            e(f"    v_dot2c_f32_bf16 v{vA+2*ee}, v{vV+4*i+ee}, v{vP+2*i}")
            e(f"    v_dot2c_f32_bf16 v{vA+2*ee+1}, v{vV+4*i+ee}, v{vP+2*i+1}")
    while nxt < len(seq):
        issue_stream(seq[nxt]); nxt += 1
    e("    s_nop 1")
    for ee in range(4):
        e(f"    v_permlane32_swap_b32 v{vA+ee}, v{vA+ee+4}")
    for ee in range(4):
        e(f"    v_add_f32 v{vA+ee}, v{vA+ee}, v{vA+ee+4}")
    e("    s_nop 0")
    e(f"    v_permlane16_swap_b32 v{vA}, v{vA+2}")
    e(f"    v_permlane16_swap_b32 v{vA+1}, v{vA+3}")
    e(f"    v_add_f32 v{vA}, v{vA}, v{vA+2}")
    e(f"    v_add_f32 v{vA+1}, v{vA+1}, v{vA+3}")
    e("    v_lshl_add_u32 v5, v4, 2, v3")
    e("    s_lshl_b32 s60, s59, 9")
    e("    v_lshl_add_u32 v5, v5, 3, s60")
    e(f"    ds_write_b64 v5, v[{vA}:{vA+1}] offset:{L_OPART}")
    e("    s_waitcnt lgkmcnt(0)")
    stamp(5)
    e("    s_barrier                          ; C")
    e("    s_cmp_eq_u32 s59, 3")
    e("    s_cbranch_scc1 L_poller")
    e("    s_cmp_ge_u32 s59, 2")
    e("    s_cbranch_scc1 L_wait_o")
    e("    s_lshl_b32 s60, s54, 5")
    e("    s_add_u32 s60, s60, s52")
    e("    s_lshl_b32 s60, s60, 2")
    e("    s_add_u32 s60, s60, s55")
    e("    s_lshl_b32 s60, s60, 11")
    e(f"    s_add_u32 s60, s60, {WS_OP}")
    e("    v_lshl_add_u32 v6, v0, 4, s60")
    e("    s_cmp_eq_u32 s59, 1")
    e("    s_cbranch_scc1 L_pubstats")
    e("    v_lshlrev_b32 v5, 3, v1")
    for p in range(8):
        e(f"    ds_read_b64 v[{vK+2*p}:{vK+2*p+1}], v5 offset:{L_OPART + p*512}")
    e("    s_waitcnt lgkmcnt(0)")
    for st in (4, 2, 1):
        for p in range(st):
            e(f"    v_add_f32 v{vK+2*p}, v{vK+2*p}, v{vK+2*(p+st)}")
            e(f"    v_add_f32 v{vK+2*p+1}, v{vK+2*p+1}, v{vK+2*(p+st)+1}")
    e(f"    v_mov_b32 v{vK+2}, v{vTAG}")
    e(f"    v_mov_b32 v{vK+3}, v{vTAG+1}")
    e(f"    buffer_store_dwordx4 v[{vK}:{vK+3}], v6, s[{sWS}:{sWS+3}], 0 offen sc1")
    stamp(6)
    e("    s_branch L_wait_o")
    e("L_pubstats:")
    e("    v_mov_b32 v5, 0")
    e(f"    ds_read_b128 v[{vK+4}:{vK+7}], v5 offset:{L_LSUM}")
    e(f"    ds_read_b128 v[{vK+8}:{vK+11}], v5 offset:{L_LSUM+16}")
    e("    s_waitcnt lgkmcnt(0)")
    for p in range(4):
        e(f"    v_add_f32 v{vK+4+p}, v{vK+4+p}, v{vK+8+p}")
    e(f"    v_add_f32 v{vK+4}, v{vK+4}, v{vK+6}")
    e(f"    v_add_f32 v{vK+5}, v{vK+5}, v{vK+7}")
    e(f"    v_add_f32 v{vK}, v{vK+4}, v{vK+5}")
    e(f"    v_mov_b32 v{vK+1}, v10")
    e(f"    v_mov_b32 v{vK+2}, v{vTAG}")
    e(f"    v_mov_b32 v{vK+3}, v{vTAG+1}")
    e("    s_mov_b64 exec, 1")
    e(f"    buffer_store_dwordx4 v[{vK}:{vK+3}], v6, s[{sWS}:{sWS+3}], 0 offen sc1")
    e("    s_mov_b64 exec, -1")
    e("    s_branch L_wait_o")
    e("L_poller:")
    e("    s_lshl_b32 s60, s52, 13           ; h*4*2048")
    e(f"    s_add_u32 s60, s60, {WS_OP}")
    e("    v_and_b32 v5, 31, v1")
    e("    v_lshl_add_u32 v5, v5, 5, s60")
    e("    v_lshrrev_b32 v6, 5, v1")
    e("    v_lshlrev_b32 v6, 18, v6          ; b*32*4*2048")
    e("    v_add_u32 v5, v5, v6")
    e("    v_add_u32 v6, s60, v6")
    e("    v_add_u32 v7, 0x1000, v5")
    e("    v_add_u32 v8, 0x1000, v6")
    e("    v_lshrrev_b32 v9, 2, v1")
    e("    v_lshlrev_b32 v9, 18, v9")
    e("    v_and_b32 v2, 3, v1")
    e("    v_lshl_add_u32 v9, v2, 11, v9")
    e("    v_add_u32 v9, s60, v9")
    e("    v_add_u32 v9, 0x400, v9")
    light_poll("L_lp2", 9, 8, vTAG, vTAG + 1, vS)
    e("    s_mov_b32 s64, 0")
    e("L_poll2:")
    G = []
    for ss in range(4):
        for hf in range(2):
            r = vK + (ss * 2 + hf) * 4
            e(f"    buffer_load_dwordx4 v[{r}:{r+3}], v{5 if ss<2 else 7}, s[{sWS}:{sWS+3}], 0 offen offset:{(ss%2)*2048+hf*16} sc1")
            G.append(r)
    for ss in range(4):
        r = vK + 32 + ss * 4
        e(f"    buffer_load_dwordx4 v[{r}:{r+3}], v{6 if ss<2 else 8}, s[{sWS}:{sWS+3}], 0 offen offset:{(ss%2)*2048+1024} sc1")
        G.append(r)
    e("    s_waitcnt vmcnt(0)")
    tagcheck(G, vTAG, vTAG + 1, vS)
    spin_tail("L_poll2")
    l = [vK + 32 + 4 * ss for ss in range(4)]
    m = [x + 1 for x in l]
    def oreg(ss, r):
        return vK + (ss * 2 + r // 2) * 4 + (r % 2)
    T = vA
    e(f"    v_max3_f32 v9, v{m[0]}, v{m[1]}, v{m[2]}")
    e(f"    v_max_f32 v9, v9, v{m[3]}")
    for ss in range(4):
        e(f"    v_sub_f32 v{T+ss}, v{m[ss]}, v9")
    for ss in range(4):
        e(f"    v_exp_f32 v{T+ss}, v{T+ss}")
    e("    s_nop 0")
    e(f"    v_mul_f32 v9, v{T}, v{l[0]}")
    for ss in range(1, 4):
        e(f"    v_fmac_f32 v9, v{T+ss}, v{l[ss]}")
    e("    v_rcp_f32 v9, v9")
    for r in range(4):
        e(f"    v_mul_f32 v{T+4+r}, v{T}, v{oreg(0, r)}")
        for ss in range(1, 4):
            e(f"    v_fmac_f32 v{T+4+r}, v{T+ss}, v{oreg(ss, r)}")
    for r in range(4):
        e(f"    v_mul_f32 v{T+4+r}, v{T+4+r}, v9")
    e(f"    v_cvt_pk_bf16_f32 v{T+8}, v{T+4}, v{T+5}")
    e(f"    v_cvt_pk_bf16_f32 v{T+9}, v{T+6}, v{T+7}")
    for p in range(2):
        base = vS + 4 * p
        e(f"    v_and_b32 v{base}, 0xffff, v{T+8+p}")
        e(f"    v_lshlrev_b32 v{base+1}, 16, v{T+8+p}")
        e(f"    v_lshrrev_b32 v{base+2}, 16, v{T+8+p}")
        e(f"    v_and_b32 v{base+3}, 0xffff0000, v{T+8+p}")
    e("    v_lshlrev_b32 v5, 5, v1")
    e(f"    ds_write_b128 v5, v[{vS}:{vS+3}] offset:{L_OFIN}")
    e(f"    ds_write_b128 v5, v[{vS+4}:{vS+7}] offset:{L_OFIN+16}")
    e("    s_waitcnt lgkmcnt(0)")
    e("L_wait_o:")
    e("    s_barrier")
    stamp(7)
    e("    s_lshl_b32 s60, s59, 7            ; 16w*8")
    e("    v_lshl_add_u32 v5, v13, 5, s60")
    e("    s_mov_b64 exec, s[70:71]")
    e(f"    ds_read_b128 v[{vK}:{vK+3}], v5 offset:{L_OFIN}")
    e(f"    ds_read_b128 v[{vK+4}:{vK+7}], v5 offset:{L_OFIN+16}")
    e(f"    ds_read_b128 v[{vK+8}:{vK+11}], v5 offset:{L_OFIN+1024}")
    e(f"    ds_read_b128 v[{vK+12}:{vK+15}], v5 offset:{L_OFIN+1040}")
    for a in range(16):
        e(f"    v_mov_b32 v{vA+a}, 0")
    e("    s_waitcnt vmcnt(0) lgkmcnt(0)")
    for r in range(4):
        for bb in range(2):
            lo = vK + bb * 8 + r * 2
            for ee in range(4):
                e(f"    v_dot2c_f32_bf16 v{vA+bb*8+2*ee}, v{vWO+4*r+ee}, v{lo}")
                e(f"    v_dot2c_f32_bf16 v{vA+bb*8+2*ee+1}, v{vWO+4*r+ee}, v{lo+1}")
    e("    s_mov_b64 exec, -1")
    e("    s_nop 1")
    for ee in range(8):
        e(f"    v_permlane32_swap_b32 v{vA+ee}, v{vA+ee+8}")
    for ee in range(8):
        e(f"    v_add_f32 v{vA+ee}, v{vA+ee}, v{vA+ee+8}")
    for ee in range(4):
        e(f"    v_permlane16_swap_b32 v{vA+ee}, v{vA+ee+4}")
    for ee in range(4):
        e(f"    v_add_f32 v{vA+ee}, v{vA+ee}, v{vA+ee+4}")
    e("    v_lshrrev_b32 v5, 1, v3")
    e("    v_mul_u32_u24 v5, 320, v5")
    e("    v_lshl_add_u32 v5, v4, 5, v5")
    e("    v_and_b32 v6, 1, v3")
    e("    v_lshl_add_u32 v5, v6, 4, v5")
    e("    s_mul_i32 s60, s59, 640")
    e("    v_add_u32 v5, s60, v5")
    e("    s_mov_b64 exec, s[70:71]")
    e(f"    ds_write_b128 v5, v[{vA}:{vA+3}] offset:{L_YPART}")
    e("    s_mov_b64 exec, -1")
    e("    s_waitcnt lgkmcnt(0)")
    e("    s_barrier                          ; D")
    e("    s_cmp_ge_u32 s59, 2")
    e("    s_cbranch_scc1 L_end")
    e("    v_lshlrev_b32 v5, 3, v0           ; t*8")
    for p in range(8):
        e(f"    ds_read_b64 v[{vK+2*p}:{vK+2*p+1}], v5 offset:{L_YPART + p*640}")
    e("    s_waitcnt lgkmcnt(0)")
    for st in (4, 2, 1):
        for p in range(st):
            e(f"    v_add_f32 v{vK+2*p}, v{vK+2*p}, v{vK+2*(p+st)}")
            e(f"    v_add_f32 v{vK+2*p+1}, v{vK+2*p+1}, v{vK+2*(p+st)+1}")
    e(f"    v_mov_b32 v{vK+2}, v{vTAG}")
    e(f"    v_mov_b32 v{vK+3}, v{vTAG+1}")
    e("    s_lshl_b32 s60, s53, 5")
    e("    s_add_u32 s60, s60, s52")
    e("    s_lshl_b32 s60, s60, 11")
    e(f"    s_add_u32 s60, s60, {WS_YP}")
    e("    v_lshl_add_u32 v7, v0, 4, s60")
    e("    v_cmp_gt_u32 vcc, 80, v0")
    e("    s_and_saveexec_b64 s[72:73], vcc")
    e(f"    buffer_store_dwordx4 v[{vK}:{vK+3}], v7, s[{sWS}:{sWS+3}], 0 offen sc1")
    e("    s_mov_b64 exec, -1")
    stamp(8)
    e("    s_cmp_lg_u32 s59, 0")
    e("    s_cbranch_scc1 L_end")
    e("    s_cmp_ge_u32 s52, 20")
    e("    s_cbranch_scc1 L_dump0" if STAMPS else "    s_cbranch_scc1 L_end")
    e("    s_lshl_b32 s60, s53, 16")
    e(f"    s_add_u32 s60, s60, {WS_YP}")
    e("    s_lshl_b32 s61, s52, 6")
    e("    s_add_u32 s60, s60, s61")
    e("    v_and_b32 v5, 31, v1")
    e("    v_lshl_add_u32 v5, v5, 11, s60")
    e("    v_lshrrev_b32 v6, 5, v1")
    e("    v_lshl_add_u32 v5, v6, 5, v5")
    e("    s_mov_b32 s64, 0")
    e("L_poll3:")
    e(f"    buffer_load_dwordx4 v[16:19], v5, s[{sWS}:{sWS+3}], 0 offen sc1")
    e(f"    buffer_load_dwordx4 v[20:23], v5, s[{sWS}:{sWS+3}], 0 offen offset:16 sc1")
    e("    s_waitcnt vmcnt(0)")
    tagcheck([16, 20], vTAG, vTAG + 1, 24)
    spin_tail("L_poll3")
    e("    v_mov_b32 v18, v20")
    e("    v_mov_b32 v19, v21")
    e("    s_nop 1")
    for sh in (8, 4, 2, 1):
        for r in range(4):
            e(f"    v_add_f32_dpp v{16+r}, v{16+r}, v{16+r} row_ror:{sh} row_mask:0xf bank_mask:0xf")
    for r in range(4):
        e(f"    v_mov_b32 v{20+r}, v{16+r}")
    e("    s_nop 1")
    for r in range(4):
        e(f"    v_permlane16_swap_b32 v{16+r}, v{20+r}")
    for r in range(4):
        e(f"    v_add_f32 v{16+r}, v{16+r}, v{20+r}")
    e("    v_cvt_pk_bf16_f32 v16, v16, v17")
    e("    v_cvt_pk_bf16_f32 v17, v18, v19")
    e("    s_lshl_b32 s60, s52, 3")
    e("    s_mul_i32 s61, s53, 80")
    e("    s_add_u32 s60, s60, s61")
    e("    s_add_u32 s61, s60, 560")
    e("    s_cmp_ge_u32 s52, 10")
    e("    s_cselect_b32 s60, s61, s60")
    e("    v_lshl_add_u32 v7, v6, 2, s60")
    e("    v_lshlrev_b32 v7, 1, v7")
    e("    s_mov_b32 s72, 1")
    e("    s_mov_b32 s73, 1")
    e("    s_mov_b64 exec, s[72:73]")
    e(f"    buffer_store_dwordx2 v[16:17], v7, s[{sOUT}:{sOUT+3}], 0 offen")
    e("    s_mov_b64 exec, -1")
    stamp(9)
    if STAMPS:
        e("L_dump0:")
        e("    s_cmp_lg_u32 s59, 0")
        e("    s_cbranch_scc1 L_end")
        dump_stamps(list(range(10)))
    e("    s_branch L_end")
    e("L_control:")
    e("    v_mov_b32 v8, 0")
    e("    s_cmp_lg_u32 s2, 0")
    e("    s_cbranch_scc1 L_nononce")
    e("    s_memrealtime s[62:63]")
    e("    s_waitcnt lgkmcnt(0)")
    e("    s_or_b32 s63, s63, 0x80000000")
    e("    v_mov_b32 v10, s62")
    e("    v_mov_b32 v11, s63")
    e("    s_mov_b64 exec, 1")
    e(f"    buffer_store_dwordx2 v[10:11], v8, s[{sDBG}:{sDBG+3}], 0 offen sc1")
    e("    s_mov_b64 exec, -1")
    e("L_nononce:")
    e(f"    ds_write_b32 v8, v8 offset:{L_QFLAG}")
    e("    s_waitcnt lgkmcnt(0)")
    e("    v_lshlrev_b32 v5, 4, v1")
    e("    s_barrier")
    e("    s_barrier                          ; A")
    e(f"    buffer_load_dwordx2 v[16:17], v8, s[{sDBG}:{sDBG+3}], 0 offen sc1")
    for p in range(8):
        e(f"    ds_read_b128 v[{20+4*p}:{23+4*p}], v5 offset:{L_QPART + p*1024}")
    e("    s_waitcnt lgkmcnt(0)")
    for st in (4, 2, 1):
        for p in range(st):
            for ee in range(4):
                e(f"    v_add_f32 v{20+4*p+ee}, v{20+4*p+ee}, v{20+4*(p+st)+ee}")
    e("    s_mov_b32 s64, 0")
    e("    s_branch L_poll0_chk")
    e("L_poll0:")
    e(f"    buffer_load_dwordx2 v[16:17], v8, s[{sDBG}:{sDBG+3}], 0 offen sc1")
    e("L_poll0_chk:")
    e("    s_waitcnt vmcnt(0)")
    e("    v_cmp_eq_u32 s[74:75], 0, v17")
    spin_tail("L_poll0", 2)
    e("    v_mov_b32 v24, v22")
    e("    v_mov_b32 v25, v23")
    e("    v_mov_b32 v22, v16")
    e("    v_mov_b32 v23, v17")
    e("    v_mov_b32 v26, v16")
    e("    v_mov_b32 v27, v17")
    e("    s_lshl_b32 s60, s52, 3")
    e("    s_add_u32 s60, s60, s53")
    e("    s_lshl_b32 s60, s60, 11")
    e("    v_lshl_add_u32 v6, v1, 5, s60")
    e(f"    buffer_store_dwordx4 v[20:23], v6, s[{sWS}:{sWS+3}], 0 offen sc1")
    e(f"    buffer_store_dwordx4 v[24:27], v6, s[{sWS}:{sWS+3}], 0 offen offset:16 sc1")
    e(f"    ds_write_b64 v8, v[16:17] offset:{L_TAG}")
    stamp(10)
    e("    s_lshl_b32 s60, s52, 14")
    e("    s_lshl_b32 s61, s54, 10")
    e("    s_add_u32 s60, s60, s61")
    e("    v_lshl_add_u32 v6, v1, 4, s60")
    e("    v_lshl_add_u32 v7, v1, 11, s60")
    light_poll("L_lp1", 7, 8, 16, 17, 70)
    e("    s_mov_b32 s64, 0")
    e("L_poll1:")
    for jj in range(8):
        e(f"    s_mov_b32 s61, {(jj//2)*4096}")
        e(f"    buffer_load_dwordx4 v[{32+4*jj}:{35+4*jj}], v6, s[{sWS}:{sWS+3}], s61 offen offset:{(jj%2)*2048} sc1")
    e("    s_waitcnt vmcnt(0)")
    tagcheck([32 + 4 * jj for jj in range(8)], 16, 17, 70)
    spin_tail("L_poll1")
    stamp(11)
    for st in (4, 2, 1):
        for p in range(st):
            e(f"    v_add_f32 v{32+4*p}, v{32+4*p}, v{32+4*(p+st)}")
            e(f"    v_add_f32 v{33+4*p}, v{33+4*p}, v{33+4*(p+st)}")
    e("    v_cvt_pk_bf16_f32 v20, v32, v33")
    e("    v_lshlrev_b32 v6, 2, v1")
    e(f"    ds_write_b32 v6, v20 offset:{L_QBF}")
    e("    v_mov_b32 v9, 1")
    e(f"    ds_write_b32 v8, v9 offset:{L_QFLAG}")
    e("    s_waitcnt lgkmcnt(0)")
    e("    s_barrier                          ; B")
    stamp(12)
    dump_stamps([10, 11, 12])
    e("L_end:")
    e("    s_endpgm")
    e('.section .rodata,"a"')
    e(".p2align 6")
    e(f".amdhsa_kernel {NAME}")
    e(f"  .amdhsa_next_free_vgpr {NVGPR}")
    e("  .amdhsa_next_free_sgpr 102")
    e(f"  .amdhsa_accum_offset {NVGPR}")
    e("  .amdhsa_group_segment_fixed_size 0")
    e("  .amdhsa_kernarg_size 64")
    e("  .amdhsa_user_sgpr_count 2")
    e("  .amdhsa_user_sgpr_kernarg_segment_ptr 1")
    e("  .amdhsa_system_sgpr_workgroup_id_x 1")
    e(".end_amdhsa_kernel")

gen()
path = sys.argv[1] if len(sys.argv) > 1 else "standalone__sliding_block_cached__decode.s"
open(path, "w").write("\n".join(out) + "\n")
print("wrote", path, len(out), "lines")
```

```python
import sys, os, struct

NAME = "standalone__sliding_block_cached__decode_kernel"
WS_QP = 0
WS_OP = 512 * 1024
WS_YP = 1024 * 1024
WS_BYTES = 1536 * 1024
WS_ST = 2 * 1024 * 1024

L_QBF = 0
L_WMAX = 256
L_TAG = 320
L_QFLAG = 336
L_OFIN = 512
L_OPART = 2560
L_LSUM = 6656
L_YPART = 7168
L_QPART = 2560
LDS_BYTES = 2560 + 16384

SPIN_MAX = 200000
STAMPS = int(os.environ.get("STAMPS", "0"))
NT = os.environ.get("NT", "nt")
D = int(os.environ.get("D", "2"))
D0 = int(os.environ.get("D0", "4"))
NOBURST = int(os.environ.get("NOBURST", "0"))
PRIO = int(os.environ.get("PRIO", "0"))
NTW = os.environ.get("NTW", NT)
SLP = int(os.environ.get("SLP", "1"))
D2 = int(os.environ.get("D2", "0"))
BURST = int(os.environ.get("BURST", "12"))
if STAMPS:
    WS_BYTES = 3 * 1024 * 1024

out = []
def e(s=""):
    out.append(s)

sK, sV, sWQ, sWO, sX, sWS, sOUT, sDBG = 20, 24, 28, 32, 36, 40, 44, 48

def stamp(k):
    if STAMPS:
        e(f"    s_memrealtime s[{76+2*k}:{77+2*k}]")
def dump_stamps(ks):
    if not STAMPS:
        return
    if STAMPS == 2:
        e("    s_waitcnt lgkmcnt(0)")
        e("    s_cmp_lg_u32 s2, 0")
        e("    s_cbranch_scc1 L_end")
        e("    s_mov_b64 exec, 1")
        e("    v_mov_b32 v5, 0")
        for k in ks:
            e(f"    s_sub_u32 s60, s{76+2*k}, s76")
            e(f"    v_mov_b32 v6, s60")
            e(f"    buffer_store_dword v6, v5, s[{sDBG}:{sDBG+3}], 0 offen offset:{8+4*k}")
            e("    s_nop 1")
        return
    e("    s_waitcnt lgkmcnt(0)")
    e("    s_mov_b64 exec, 1")
    e("    s_lshl_b32 s60, s2, 7")
    e(f"    s_add_u32 s60, s60, {WS_ST}")
    e("    v_mov_b32 v5, s60")
    for k in ks:
        e(f"    v_mov_b32 v6, s{76+2*k}")
        e(f"    v_mov_b32 v7, s{77+2*k}")
        e(f"    buffer_store_dwordx2 v[6:7], v5, s[{sWS}:{sWS+3}], 0 offen offset:{8*k}")
        e("    s_nop 1")

def srd(d, p, nbytes):
    e(f"    s_mov_b32 s{d}, s{p}")
    e(f"    s_and_b32 s{d+1}, s{p+1}, 0xffff")
    e(f"    s_mov_b32 s{d+2}, {nbytes:#x}")
    e(f"    s_mov_b32 s{d+3}, 0x00020000")

vK = 16; vV = 48; vWO = 80; vA = 96; vS = 112; vQ = 120; vT = 124
vWQ = 128
vX = 140
vXH = 146
NVGPR = 168
XS = 88
vTAG = 152

queue = []
def issued(tag):
    queue.append(tag)
def wait_for(tag):
    n = len(queue) - 1 - queue.index(tag)
    e(f"    s_waitcnt vmcnt({n})")

def issue_stream(tag):
    kind, i = tag
    if kind == "k":
        e(f"    buffer_load_dwordx4 v[{vK+4*i}:{vK+4*i+3}], v{11 if i<4 else 12}, s[{sK}:{sK+3}], 0 offen offset:{(i%4)*1024} {NT}")
    elif kind == "v":
        e(f"    buffer_load_dwordx4 v[{vV+4*i}:{vV+4*i+3}], v{11 if i<4 else 12}, s[{sV}:{sV+3}], 0 offen offset:{(i%4)*1024} {NT}")
    else:
        e("    s_mov_b64 exec, s[70:71]")
        e(f"    buffer_load_dwordx4 v[{vWO+4*i}:{vWO+4*i+3}], v15, s[{sWO}:{sWO+3}], 0 offen offset:{i*1280} {NTW}")
        e("    s_mov_b64 exec, -1")
    issued(tag)

def tagcheck(granules, tl, th, tmp):
    first = True
    for g in granules:
        if first:
            e(f"    v_xor_b32 v{tmp}, v{g+2}, v{tl}")
            e(f"    v_xor_b32 v{tmp+1}, v{g+3}, v{th}")
            first = False
        else:
            e(f"    v_xor_b32 v{tmp+2}, v{g+2}, v{tl}")
            e(f"    v_xor_b32 v{tmp+3}, v{g+3}, v{th}")
            e(f"    v_or3_b32 v{tmp}, v{tmp}, v{tmp+2}, v{tmp+3}")
    e(f"    v_or_b32 v{tmp}, v{tmp}, v{tmp+1}")
    e(f"    v_cmp_ne_u32 s[74:75], 0, v{tmp}")

def spin_tail(lbl, slp=SLP):
    e("    s_add_u32 s64, s64, 1")
    e("    s_cmp_eq_u64 s[74:75], 0")
    e(f"    s_cbranch_scc1 {lbl}_done")
    e(f"    s_cmp_ge_u32 s64, {SPIN_MAX}")
    e(f"    s_cbranch_scc1 {lbl}_done")
    e(f"    s_sleep {slp}")
    e(f"    s_branch {lbl}")
    e(f"{lbl}_done:")

def light_poll(lbl, vaddr, nl, tl, th, tmp, slp=SLP):
    e(f"    s_mov_b64 s[72:73], exec")
    if nl <= 32:
        e(f"    s_mov_b64 exec, {(1<<nl)-1:#x}")
    e("    s_mov_b32 s64, 0")
    e(f"{lbl}:")
    e(f"    buffer_load_dwordx2 v[{tmp}:{tmp+1}], v{vaddr}, s[{sWS}:{sWS+3}], 0 offen offset:8 sc1")
    e("    s_waitcnt vmcnt(0)")
    e(f"    v_xor_b32 v{tmp}, v{tmp}, v{tl}")
    e(f"    v_xor_b32 v{tmp+1}, v{tmp+1}, v{th}")
    e(f"    v_or_b32 v{tmp}, v{tmp}, v{tmp+1}")
    e(f"    v_cmp_ne_u32 s[74:75], 0, v{tmp}")
    spin_tail(lbl, slp)
    e(f"    s_mov_b64 exec, s[72:73]")

def gen():
    e("; Fused decode attention: q-proj -> sliding window attention (flash-decoding split) -> out-proj")
    e(f"; @launch grid=(256,1,1) block=(576,1,1) lds={LDS_BYTES}")
    e('.amdgcn_target "amdgcn-amd-amdhsa--gfx950"')
    e(".text")
    e(f".globl {NAME}")
    e(".p2align 8")
    e(f".type {NAME},@function")
    e(f"{NAME}:")
    e("    s_cmp_ge_u32 s2, 256")
    e("    s_cbranch_scc1 L_end")
    e("    s_load_dwordx16 s[4:19], s[0:1], 0")
    e("    v_and_b32 v1, 63, v0              ; lane")
    e("    v_lshrrev_b32 v2, 6, v0")
    e("    s_and_b32 s3, s2, 7")
    e("    v_readfirstlane_b32 s59, v2")
    e("    s_lshr_b32 s57, s2, 3")
    e("    s_lshr_b32 s58, s57, 3")
    e("    s_lshl_b32 s52, s3, 2")
    e("    s_add_u32 s52, s52, s58           ; h")
    e("    s_and_b32 s53, s57, 7             ; j")
    e("    s_lshr_b32 s54, s53, 2            ; b")
    e("    s_and_b32 s55, s53, 3             ; s")
    e("    v_lshrrev_b32 v3, 4, v1           ; g = lane/16")
    e("    v_and_b32 v4, 15, v1              ; c16")
    e("    s_waitcnt lgkmcnt(0)")
    srd(sX, 4, 2 * 640 * 2)
    srd(sK, 6, 2 * 32 * 4096 * 128 * 2)
    srd(sV, 8, 2 * 32 * 4096 * 128 * 2)
    srd(sWQ, 10, 640 * 4096 * 2)
    srd(sWO, 12, 4096 * 640 * 2)
    srd(sOUT, 14, 2 * 640 * 2)
    srd(sDBG, 16, 256)
    srd(sWS, 18, WS_BYTES)
    stamp(0)
    e("    s_cmp_eq_u32 s59, 8")
    e("    s_cbranch_scc1 L_control")
    e("    s_mul_i32 s60, s53, 80")
    e("    s_lshl_b32 s61, s59, 2")
    e("    s_add_u32 s60, s60, s61")
    e("    v_add_u32 v5, s60, v3             ; row_0")
    e("    v_lshlrev_b32 v6, 13, v5")
    e("    v_lshl_add_u32 v6, v4, 4, v6")
    e("    s_lshl_b32 s62, s52, 8")
    e("    v_add_u32 v6, s62, v6")
    e("    v_add_u32 v7, 0x40000, v6")
    e("    s_mov_b32 s63, 0x80000")
    e("    s_cmp_lt_u32 s59, 4")
    e("    s_cselect_b32 s63, s63, 0x7f000000")
    e("    v_add_u32 v8, s63, v6")
    for i in range(3):
        e(f"    buffer_load_dwordx4 v[{vWQ+4*i}:{vWQ+4*i+3}], v{6+i}, s[{sWQ}:{sWQ+3}], 0 offen {NTW}")
        issued(("wq", i))
    e("    s_lshl_b32 s61, s60, 1")
    for i in range(3):
        for bb in range(2):
            d = XS + 2 * (i * 2 + bb)
            if i < 2:
                e(f"    s_add_u32 s62, s61, {i*64 + bb*1280}")
            else:
                e(f"    s_add_u32 s62, s61, {128 + bb*1280}")
                e("    s_cmp_lt_u32 s59, 4")
                e("    s_cselect_b32 s62, s62, s61")
            e(f"    s_load_dwordx2 s[{d}:{d+1}], s[4:5], s62")
    e("    s_lshl_b32 s65, s54, 25")
    e("    s_lshl_b32 s66, s52, 20")
    e("    s_add_u32 s65, s65, s66")
    e("    s_lshl_b32 s66, s55, 16")
    e("    s_add_u32 s65, s65, s66")
    e("    s_add_u32 s65, s65, 0xc0000")
    e("    s_lshl_b32 s66, s59, 13")
    e("    s_add_u32 s65, s65, s66")
    e("    v_lshlrev_b32 v11, 4, v1")
    e("    v_add_u32 v11, s65, v11")
    e("    v_add_u32 v12, 0x1000, v11")
    e("    s_barrier")
    seq = [("k", i) for i in range(8)] + [("v", i) for i in range(8)] + [("wo", i) for i in range(4)]
    nxt = 0
    for _ in range(D0):
        issue_stream(seq[nxt]); nxt += 1
    e("    v_mov_b32 v13, v3")
    e("    v_mov_b32 v14, v4                 ; ch = lane%16 (active < 10)")
    e("    s_lshl_b32 s67, s52, 7")
    e("    s_lshl_b32 s68, s59, 4")
    e("    s_add_u32 s67, s67, s68           ; h*128 + 16w")
    e("    v_lshl_add_u32 v15, v13, 2, s67   ; row (i=0)")
    e("    v_mul_u32_u24 v15, 1280, v15")
    e("    v_lshl_add_u32 v15, v14, 4, v15")
    e("    s_mul_i32 s68, s53, 160")
    e("    v_add_u32 v15, s68, v15")
    e("    s_mov_b32 s70, 0x03ff03ff")
    e("    s_mov_b32 s71, 0x03ff03ff         ; lanes with lane%16 < 10")
    for a in range(16):
        e(f"    v_mov_b32 v{vA+a}, 0")
    e("    v_and_b32 v6, 1, v3")
    e("    v_lshlrev_b32 v6, 4, v6           ; 16*(g&1)")
    e("    v_cmp_gt_u32 vcc, 2, v3           ; g < 2")
    e("    s_waitcnt lgkmcnt(0)")
    e("    s_cmp_lt_u32 s59, 4")
    for k in (4, 5):
        e(f"    s_cselect_b32 s{XS+2*k}, s{XS+2*k}, 0")
        e(f"    s_cselect_b32 s{XS+2*k+1}, s{XS+2*k+1}, 0")
    for k in range(6):
        e(f"    v_mov_b32 v7, s{XS+2*k+1}")
        e(f"    v_mov_b32 v8, s{XS+2*k}")
        e(f"    v_cndmask_b32 v7, v7, v8, vcc")
        e(f"    v_lshrrev_b32 v7, v6, v7")
        e(f"    v_and_b32 v{vX+k}, 0xffff, v7")
        e(f"    v_lshlrev_b32 v{vXH+k}, 16, v7")
    wait_for(("wq", 2))
    stamp(1)
    for i in range(3):
        for bb in range(2):
            for ee in range(4):
                e(f"    v_dot2c_f32_bf16 v{vA+bb*8+2*ee}, v{vWQ+4*i+ee}, v{vX+i*2+bb}")
                e(f"    v_dot2c_f32_bf16 v{vA+bb*8+2*ee+1}, v{vWQ+4*i+ee}, v{vXH+i*2+bb}")
    e("    s_nop 2")
    for ee in range(8):
        e(f"    v_permlane32_swap_b32 v{vA+ee}, v{vA+ee+8}")
    for ee in range(8):
        e(f"    v_add_f32 v{vA+ee}, v{vA+ee}, v{vA+ee+8}")
    for ee in range(4):
        e(f"    v_permlane16_swap_b32 v{vA+ee}, v{vA+ee+4}")
    for ee in range(4):
        e(f"    v_add_f32 v{vA+ee}, v{vA+ee}, v{vA+ee+4}")
    e("    v_lshrrev_b32 v5, 1, v3")
    e("    v_lshlrev_b32 v5, 9, v5")
    e("    v_lshl_add_u32 v5, v4, 5, v5")
    e("    v_and_b32 v6, 1, v3")
    e("    v_lshl_add_u32 v5, v6, 4, v5")
    e("    s_lshl_b32 s60, s59, 10")
    e("    v_add_u32 v5, s60, v5")
    e(f"    ds_write_b128 v5, v[{vA}:{vA+3}] offset:{L_QPART}")
    e("    s_waitcnt lgkmcnt(0)")
    e("    s_barrier                          ; A")
    stamp(2)
    e("    v_mov_b32 v5, 0")
    start = nxt
    saved = list(queue)
    while nxt < len(seq):
        e(f"    ds_read_b32 v6, v5 offset:{L_QFLAG}")
        wait_for(seq[nxt - D])
        e("    s_waitcnt lgkmcnt(0)")
        e("    v_readfirstlane_b32 s60, v6")
        e("    s_cmp_lg_u32 s60, 0")
        if not NOBURST:
            e(f"    s_cbranch_scc1 L_burst{nxt}")
        issue_stream(seq[nxt]); nxt += 1
    e("    s_branch L_issued")
    queue[:] = saved
    for k in range(start, len(seq)):
        e(f"L_burst{k}:")
        if D2 and k - D2 >= 0:
            wait_for(seq[k - D2])
        issue_stream(seq[k])
    e("L_issued:")
    e("    s_barrier                          ; B (q ready)")
    stamp(3)
    e("    v_lshlrev_b32 v5, 4, v4")
    e(f"    ds_read_b128 v[{vQ}:{vQ+3}], v5 offset:{L_QBF}")
    e("    v_mov_b32 v5, 0")
    e(f"    ds_read_b64 v[{vTAG}:{vTAG+1}], v5 offset:{L_TAG}")
    for i in range(8):
        e(f"    v_mov_b32 v{vS+i}, 0")
    wait_for(("k", 7))
    e("    s_waitcnt lgkmcnt(0)")
    for i in range(8):
        for ee in range(4):
            e(f"    v_dot2c_f32_bf16 v{vS+i}, v{vK+4*i+ee}, v{vQ+ee}")
    e("    s_nop 2")
    for sh in (8, 4, 2, 1):
        for i in range(8):
            e(f"    v_add_f32_dpp v{vS+i}, v{vS+i}, v{vS+i} row_ror:{sh} row_mask:0xf bank_mask:0xf")
    c = (128 ** -0.5) * 1.4426950408889634
    cbits = struct.unpack("<I", struct.pack("<f", c))[0]
    e(f"    s_mov_b32 s60, {cbits:#x}")
    for i in range(8):
        e(f"    v_mul_f32 v{vS+i}, s60, v{vS+i}")
    e(f"    v_max3_f32 v6, v{vS}, v{vS+1}, v{vS+2}")
    e(f"    v_max3_f32 v7, v{vS+3}, v{vS+4}, v{vS+5}")
    e(f"    v_max3_f32 v6, v6, v{vS+6}, v{vS+7}")
    e("    v_max_f32 v6, v6, v7")
    e("    s_nop 1")
    e("    v_readlane_b32 s60, v6, 0")
    e("    v_readlane_b32 s61, v6, 16")
    e("    v_readlane_b32 s62, v6, 32")
    e("    v_readlane_b32 s63, v6, 48")
    e("    s_nop 1")
    e("    v_mov_b32 v7, s60")
    e("    v_max_f32 v7, s61, v7")
    e("    v_max_f32 v7, s62, v7")
    e("    v_max_f32 v7, s63, v7")
    e("    s_lshl_b32 s60, s59, 2")
    e("    v_mov_b32 v5, s60")
    e(f"    ds_write_b32 v5, v7 offset:{L_WMAX}")
    e("    s_waitcnt lgkmcnt(0)")
    stamp(4)
    e("    s_barrier                          ; M")
    e("    v_mov_b32 v5, 0")
    e(f"    ds_read_b128 v[{vK}:{vK+3}], v5 offset:{L_WMAX}")
    e(f"    ds_read_b128 v[{vK+4}:{vK+7}], v5 offset:{L_WMAX+16}")
    e("    s_waitcnt lgkmcnt(0)")
    e(f"    v_max3_f32 v10, v{vK}, v{vK+1}, v{vK+2}")
    e(f"    v_max3_f32 v6, v{vK+3}, v{vK+4}, v{vK+5}")
    e(f"    v_max3_f32 v10, v10, v{vK+6}, v{vK+7}")
    e("    v_max_f32 v10, v10, v6")
    for i in range(8):
        e(f"    v_sub_f32 v{vS+i}, v{vS+i}, v10")
    for i in range(8):
        e(f"    v_exp_f32 v{vS+i}, v{vS+i}")
    e("    s_nop 0")
    for i in range(0, 8, 2):
        e(f"    v_cvt_pk_bf16_f32 v{vK+16+i//2}, v{vS+i}, v{vS+i+1}")
    vP = vK
    for i in range(0, 8, 2):
        P = vK + 16 + i // 2
        e(f"    v_and_b32 v{vP+2*i}, 0xffff, v{P}")
        e(f"    v_lshlrev_b32 v{vP+2*i+1}, 16, v{P}")
        e(f"    v_lshrrev_b32 v{vP+2*i+2}, 16, v{P}")
        e(f"    v_and_b32 v{vP+2*i+3}, 0xffff0000, v{P}")
    e(f"    v_add_f32 v6, v{vP+1}, v{vP+3}")
    e(f"    v_add_f32 v7, v{vP+5}, v{vP+7}")
    e(f"    v_add_f32 v8, v{vP+9}, v{vP+11}")
    e(f"    v_add_f32 v9, v{vP+13}, v{vP+15}")
    e("    v_add_f32 v6, v6, v7")
    e("    v_add_f32 v8, v8, v9")
    e("    v_add_f32 v9, v6, v8")
    e("    s_nop 1")
    e("    v_readlane_b32 s60, v9, 0")
    e("    v_readlane_b32 s61, v9, 16")
    e("    v_readlane_b32 s62, v9, 32")
    e("    v_readlane_b32 s63, v9, 48")
    e("    s_nop 1")
    e("    v_mov_b32 v9, s60")
    e("    v_add_f32 v9, s61, v9")
    e("    v_add_f32 v9, s62, v9")
    e("    v_add_f32 v9, s63, v9             ; wave l")
    e("    s_lshl_b32 s60, s59, 2")
    e("    v_mov_b32 v5, s60")
    e(f"    ds_write_b32 v5, v9 offset:{L_LSUM}")
    for a in range(8):
        e(f"    v_mov_b32 v{vA+a}, 0")
    for i in range(8):
        wait_for(("v", i))
        if nxt < len(seq):
            issue_stream(seq[nxt]); nxt += 1
        for ee in range(4):
            e(f"    v_dot2c_f32_bf16 v{vA+2*ee}, v{vV+4*i+ee}, v{vP+2*i}")
            e(f"    v_dot2c_f32_bf16 v{vA+2*ee+1}, v{vV+4*i+ee}, v{vP+2*i+1}")
    while nxt < len(seq):
        issue_stream(seq[nxt]); nxt += 1
    e("    s_nop 1")
    for ee in range(4):
        e(f"    v_permlane32_swap_b32 v{vA+ee}, v{vA+ee+4}")
    for ee in range(4):
        e(f"    v_add_f32 v{vA+ee}, v{vA+ee}, v{vA+ee+4}")
    e("    s_nop 0")
    e(f"    v_permlane16_swap_b32 v{vA}, v{vA+2}")
    e(f"    v_permlane16_swap_b32 v{vA+1}, v{vA+3}")
    e(f"    v_add_f32 v{vA}, v{vA}, v{vA+2}")
    e(f"    v_add_f32 v{vA+1}, v{vA+1}, v{vA+3}")
    e("    v_lshl_add_u32 v5, v4, 2, v3")
    e("    s_lshl_b32 s60, s59, 9")
    e("    v_lshl_add_u32 v5, v5, 3, s60")
    e(f"    ds_write_b64 v5, v[{vA}:{vA+1}] offset:{L_OPART}")
    e("    s_waitcnt lgkmcnt(0)")
    stamp(5)
    e("    s_barrier                          ; C")
    e("    s_cmp_eq_u32 s59, 3")
    e("    s_cbranch_scc1 L_poller")
    e("    s_cmp_ge_u32 s59, 2")
    e("    s_cbranch_scc1 L_wait_o")
    e("    s_lshl_b32 s60, s54, 5")
    e("    s_add_u32 s60, s60, s52")
    e("    s_lshl_b32 s60, s60, 2")
    e("    s_add_u32 s60, s60, s55")
    e("    s_lshl_b32 s60, s60, 11")
    e(f"    s_add_u32 s60, s60, {WS_OP}")
    e("    v_lshl_add_u32 v6, v0, 4, s60")
    e("    s_cmp_eq_u32 s59, 1")
    e("    s_cbranch_scc1 L_pubstats")
    e("    v_lshlrev_b32 v5, 3, v1")
    for p in range(8):
        e(f"    ds_read_b64 v[{vK+2*p}:{vK+2*p+1}], v5 offset:{L_OPART + p*512}")
    e("    s_waitcnt lgkmcnt(0)")
    for st in (4, 2, 1):
        for p in range(st):
            e(f"    v_add_f32 v{vK+2*p}, v{vK+2*p}, v{vK+2*(p+st)}")
            e(f"    v_add_f32 v{vK+2*p+1}, v{vK+2*p+1}, v{vK+2*(p+st)+1}")
    e(f"    v_mov_b32 v{vK+2}, v{vTAG}")
    e(f"    v_mov_b32 v{vK+3}, v{vTAG+1}")
    e(f"    buffer_store_dwordx4 v[{vK}:{vK+3}], v6, s[{sWS}:{sWS+3}], 0 offen sc1")
    stamp(6)
    e("    s_branch L_wait_o")
    e("L_pubstats:")
    e("    v_mov_b32 v5, 0")
    e(f"    ds_read_b128 v[{vK+4}:{vK+7}], v5 offset:{L_LSUM}")
    e(f"    ds_read_b128 v[{vK+8}:{vK+11}], v5 offset:{L_LSUM+16}")
    e("    s_waitcnt lgkmcnt(0)")
    for p in range(4):
        e(f"    v_add_f32 v{vK+4+p}, v{vK+4+p}, v{vK+8+p}")
    e(f"    v_add_f32 v{vK+4}, v{vK+4}, v{vK+6}")
    e(f"    v_add_f32 v{vK+5}, v{vK+5}, v{vK+7}")
    e(f"    v_add_f32 v{vK}, v{vK+4}, v{vK+5}")
    e(f"    v_mov_b32 v{vK+1}, v10")
    e(f"    v_mov_b32 v{vK+2}, v{vTAG}")
    e(f"    v_mov_b32 v{vK+3}, v{vTAG+1}")
    e("    s_mov_b64 exec, 1")
    e(f"    buffer_store_dwordx4 v[{vK}:{vK+3}], v6, s[{sWS}:{sWS+3}], 0 offen sc1")
    e("    s_mov_b64 exec, -1")
    e("    s_branch L_wait_o")
    e("L_poller:")
    if PRIO:
        e("    s_setprio 3")
    e("    s_lshl_b32 s60, s52, 13           ; h*4*2048")
    e(f"    s_add_u32 s60, s60, {WS_OP}")
    e("    v_and_b32 v5, 31, v1")
    e("    v_lshl_add_u32 v5, v5, 5, s60")
    e("    v_lshrrev_b32 v6, 5, v1")
    e("    v_lshlrev_b32 v6, 18, v6          ; b*32*4*2048")
    e("    v_add_u32 v5, v5, v6")
    e("    v_add_u32 v6, s60, v6")
    e("    v_add_u32 v7, 0x1000, v5")
    e("    v_add_u32 v8, 0x1000, v6")
    e("    v_lshrrev_b32 v9, 2, v1")
    e("    v_lshlrev_b32 v9, 18, v9")
    e("    v_and_b32 v2, 3, v1")
    e("    v_lshl_add_u32 v9, v2, 11, v9")
    e("    v_add_u32 v9, s60, v9")
    e("    v_add_u32 v9, 0x400, v9")
    light_poll("L_lp2", 9, 8, vTAG, vTAG + 1, vS)
    e("    s_mov_b32 s64, 0")
    e("L_poll2:")
    G = []
    for ss in range(4):
        for hf in range(2):
            r = vK + (ss * 2 + hf) * 4
            e(f"    buffer_load_dwordx4 v[{r}:{r+3}], v{5 if ss<2 else 7}, s[{sWS}:{sWS+3}], 0 offen offset:{(ss%2)*2048+hf*16} sc1")
            G.append(r)
    for ss in range(4):
        r = vK + 32 + ss * 4
        e(f"    buffer_load_dwordx4 v[{r}:{r+3}], v{6 if ss<2 else 8}, s[{sWS}:{sWS+3}], 0 offen offset:{(ss%2)*2048+1024} sc1")
        G.append(r)
    e("    s_waitcnt vmcnt(0)")
    tagcheck(G, vTAG, vTAG + 1, vS)
    spin_tail("L_poll2")
    l = [vK + 32 + 4 * ss for ss in range(4)]
    m = [x + 1 for x in l]
    def oreg(ss, r):
        return vK + (ss * 2 + r // 2) * 4 + (r % 2)
    T = vA
    e(f"    v_max3_f32 v9, v{m[0]}, v{m[1]}, v{m[2]}")
    e(f"    v_max_f32 v9, v9, v{m[3]}")
    for ss in range(4):
        e(f"    v_sub_f32 v{T+ss}, v{m[ss]}, v9")
    for ss in range(4):
        e(f"    v_exp_f32 v{T+ss}, v{T+ss}")
    e("    s_nop 0")
    e(f"    v_mul_f32 v9, v{T}, v{l[0]}")
    for ss in range(1, 4):
        e(f"    v_fmac_f32 v9, v{T+ss}, v{l[ss]}")
    e("    v_rcp_f32 v9, v9")
    for r in range(4):
        e(f"    v_mul_f32 v{T+4+r}, v{T}, v{oreg(0, r)}")
        for ss in range(1, 4):
            e(f"    v_fmac_f32 v{T+4+r}, v{T+ss}, v{oreg(ss, r)}")
    for r in range(4):
        e(f"    v_mul_f32 v{T+4+r}, v{T+4+r}, v9")
    e(f"    v_cvt_pk_bf16_f32 v{T+8}, v{T+4}, v{T+5}")
    e(f"    v_cvt_pk_bf16_f32 v{T+9}, v{T+6}, v{T+7}")
    for p in range(2):
        base = vS + 4 * p
        e(f"    v_and_b32 v{base}, 0xffff, v{T+8+p}")
        e(f"    v_lshlrev_b32 v{base+1}, 16, v{T+8+p}")
        e(f"    v_lshrrev_b32 v{base+2}, 16, v{T+8+p}")
        e(f"    v_and_b32 v{base+3}, 0xffff0000, v{T+8+p}")
    e("    v_lshlrev_b32 v5, 5, v1")
    e(f"    ds_write_b128 v5, v[{vS}:{vS+3}] offset:{L_OFIN}")
    e(f"    ds_write_b128 v5, v[{vS+4}:{vS+7}] offset:{L_OFIN+16}")
    e("    s_waitcnt lgkmcnt(0)")
    e("L_wait_o:")
    e("    s_barrier")
    stamp(7)
    e("    s_lshl_b32 s60, s59, 7            ; 16w*8")
    e("    v_lshl_add_u32 v5, v13, 5, s60")
    e("    s_mov_b64 exec, s[70:71]")
    e(f"    ds_read_b128 v[{vK}:{vK+3}], v5 offset:{L_OFIN}")
    e(f"    ds_read_b128 v[{vK+4}:{vK+7}], v5 offset:{L_OFIN+16}")
    e(f"    ds_read_b128 v[{vK+8}:{vK+11}], v5 offset:{L_OFIN+1024}")
    e(f"    ds_read_b128 v[{vK+12}:{vK+15}], v5 offset:{L_OFIN+1040}")
    for a in range(16):
        e(f"    v_mov_b32 v{vA+a}, 0")
    e("    s_waitcnt vmcnt(0) lgkmcnt(0)")
    for r in range(4):
        for bb in range(2):
            lo = vK + bb * 8 + r * 2
            for ee in range(4):
                e(f"    v_dot2c_f32_bf16 v{vA+bb*8+2*ee}, v{vWO+4*r+ee}, v{lo}")
                e(f"    v_dot2c_f32_bf16 v{vA+bb*8+2*ee+1}, v{vWO+4*r+ee}, v{lo+1}")
    e("    s_mov_b64 exec, -1")
    e("    s_nop 1")
    for ee in range(8):
        e(f"    v_permlane32_swap_b32 v{vA+ee}, v{vA+ee+8}")
    for ee in range(8):
        e(f"    v_add_f32 v{vA+ee}, v{vA+ee}, v{vA+ee+8}")
    for ee in range(4):
        e(f"    v_permlane16_swap_b32 v{vA+ee}, v{vA+ee+4}")
    for ee in range(4):
        e(f"    v_add_f32 v{vA+ee}, v{vA+ee}, v{vA+ee+4}")
    e("    v_lshrrev_b32 v5, 1, v3")
    e("    v_mul_u32_u24 v5, 320, v5")
    e("    v_lshl_add_u32 v5, v4, 5, v5")
    e("    v_and_b32 v6, 1, v3")
    e("    v_lshl_add_u32 v5, v6, 4, v5")
    e("    s_mul_i32 s60, s59, 640")
    e("    v_add_u32 v5, s60, v5")
    e("    s_mov_b64 exec, s[70:71]")
    e(f"    ds_write_b128 v5, v[{vA}:{vA+3}] offset:{L_YPART}")
    e("    s_mov_b64 exec, -1")
    e("    s_waitcnt lgkmcnt(0)")
    e("    s_barrier                          ; D")
    e("    s_cmp_ge_u32 s59, 2")
    e("    s_cbranch_scc1 L_end")
    e("    v_lshlrev_b32 v5, 3, v0           ; t*8")
    for p in range(8):
        e(f"    ds_read_b64 v[{vK+2*p}:{vK+2*p+1}], v5 offset:{L_YPART + p*640}")
    e("    s_waitcnt lgkmcnt(0)")
    for st in (4, 2, 1):
        for p in range(st):
            e(f"    v_add_f32 v{vK+2*p}, v{vK+2*p}, v{vK+2*(p+st)}")
            e(f"    v_add_f32 v{vK+2*p+1}, v{vK+2*p+1}, v{vK+2*(p+st)+1}")
    e(f"    v_mov_b32 v{vK+2}, v{vTAG}")
    e(f"    v_mov_b32 v{vK+3}, v{vTAG+1}")
    e("    s_lshl_b32 s60, s53, 5")
    e("    s_add_u32 s60, s60, s52")
    e("    s_lshl_b32 s60, s60, 11")
    e(f"    s_add_u32 s60, s60, {WS_YP}")
    e("    v_lshl_add_u32 v7, v0, 4, s60")
    e("    v_cmp_gt_u32 vcc, 80, v0")
    e("    s_and_saveexec_b64 s[72:73], vcc")
    e(f"    buffer_store_dwordx4 v[{vK}:{vK+3}], v7, s[{sWS}:{sWS+3}], 0 offen sc1")
    e("    s_mov_b64 exec, -1")
    stamp(8)
    e("    s_cmp_lg_u32 s59, 0")
    e("    s_cbranch_scc1 L_end")
    e("    s_cmp_ge_u32 s52, 20")
    e("    s_cbranch_scc1 L_dump0" if STAMPS else "    s_cbranch_scc1 L_end")
    e("    s_lshl_b32 s60, s53, 16")
    e(f"    s_add_u32 s60, s60, {WS_YP}")
    e("    s_lshl_b32 s61, s52, 6")
    e("    s_add_u32 s60, s60, s61")
    e("    v_and_b32 v5, 31, v1")
    e("    v_lshl_add_u32 v5, v5, 11, s60")
    e("    v_lshrrev_b32 v6, 5, v1")
    e("    v_lshl_add_u32 v5, v6, 5, v5")
    e("    s_mov_b32 s64, 0")
    e("L_poll3:")
    e(f"    buffer_load_dwordx4 v[16:19], v5, s[{sWS}:{sWS+3}], 0 offen sc1")
    e(f"    buffer_load_dwordx4 v[20:23], v5, s[{sWS}:{sWS+3}], 0 offen offset:16 sc1")
    e("    s_waitcnt vmcnt(0)")
    tagcheck([16, 20], vTAG, vTAG + 1, 24)
    spin_tail("L_poll3")
    e("    v_mov_b32 v18, v20")
    e("    v_mov_b32 v19, v21")
    e("    s_nop 1")
    for sh in (8, 4, 2, 1):
        for r in range(4):
            e(f"    v_add_f32_dpp v{16+r}, v{16+r}, v{16+r} row_ror:{sh} row_mask:0xf bank_mask:0xf")
    for r in range(4):
        e(f"    v_mov_b32 v{20+r}, v{16+r}")
    e("    s_nop 1")
    for r in range(4):
        e(f"    v_permlane16_swap_b32 v{16+r}, v{20+r}")
    for r in range(4):
        e(f"    v_add_f32 v{16+r}, v{16+r}, v{20+r}")
    e("    v_cvt_pk_bf16_f32 v16, v16, v17")
    e("    v_cvt_pk_bf16_f32 v17, v18, v19")
    e("    s_lshl_b32 s60, s52, 3")
    e("    s_mul_i32 s61, s53, 80")
    e("    s_add_u32 s60, s60, s61")
    e("    s_add_u32 s61, s60, 560")
    e("    s_cmp_ge_u32 s52, 10")
    e("    s_cselect_b32 s60, s61, s60")
    e("    v_lshl_add_u32 v7, v6, 2, s60")
    e("    v_lshlrev_b32 v7, 1, v7")
    e("    s_mov_b32 s72, 1")
    e("    s_mov_b32 s73, 1")
    e("    s_mov_b64 exec, s[72:73]")
    e(f"    buffer_store_dwordx2 v[16:17], v7, s[{sOUT}:{sOUT+3}], 0 offen")
    e("    s_mov_b64 exec, -1")
    stamp(9)
    if STAMPS:
        e("L_dump0:")
        e("    s_cmp_lg_u32 s59, 0")
        e("    s_cbranch_scc1 L_end")
        dump_stamps(list(range(10)))
    e("    s_branch L_end")
    e("L_control:")
    if PRIO:
        e("    s_setprio 3")
    e("    v_mov_b32 v8, 0")
    e("    s_cmp_lg_u32 s2, 0")
    e("    s_cbranch_scc1 L_nononce")
    e("    s_memrealtime s[62:63]")
    e("    s_waitcnt lgkmcnt(0)")
    e("    s_or_b32 s63, s63, 0x80000000")
    e("    v_mov_b32 v10, s62")
    e("    v_mov_b32 v11, s63")
    e("    s_mov_b64 exec, 1")
    e(f"    buffer_store_dwordx2 v[10:11], v8, s[{sDBG}:{sDBG+3}], 0 offen sc1")
    e("    s_mov_b64 exec, -1")
    e("L_nononce:")
    e(f"    ds_write_b32 v8, v8 offset:{L_QFLAG}")
    e("    s_waitcnt lgkmcnt(0)")
    e("    v_lshlrev_b32 v5, 4, v1")
    e("    s_barrier")
    e("    s_barrier                          ; A")
    e(f"    buffer_load_dwordx2 v[16:17], v8, s[{sDBG}:{sDBG+3}], 0 offen sc1")
    for p in range(8):
        e(f"    ds_read_b128 v[{20+4*p}:{23+4*p}], v5 offset:{L_QPART + p*1024}")
    e("    s_waitcnt lgkmcnt(0)")
    for st in (4, 2, 1):
        for p in range(st):
            for ee in range(4):
                e(f"    v_add_f32 v{20+4*p+ee}, v{20+4*p+ee}, v{20+4*(p+st)+ee}")
    e("    s_mov_b32 s64, 0")
    e("    s_branch L_poll0_chk")
    e("L_poll0:")
    e(f"    buffer_load_dwordx2 v[16:17], v8, s[{sDBG}:{sDBG+3}], 0 offen sc1")
    e("L_poll0_chk:")
    e("    s_waitcnt vmcnt(0)")
    e("    v_cmp_eq_u32 s[74:75], 0, v17")
    spin_tail("L_poll0", 2)
    e("    v_mov_b32 v24, v22")
    e("    v_mov_b32 v25, v23")
    e("    v_mov_b32 v22, v16")
    e("    v_mov_b32 v23, v17")
    e("    v_mov_b32 v26, v16")
    e("    v_mov_b32 v27, v17")
    e("    s_lshl_b32 s60, s52, 3")
    e("    s_add_u32 s60, s60, s53")
    e("    s_lshl_b32 s60, s60, 11")
    e("    v_lshl_add_u32 v6, v1, 5, s60")
    e(f"    buffer_store_dwordx4 v[20:23], v6, s[{sWS}:{sWS+3}], 0 offen sc1")
    e(f"    buffer_store_dwordx4 v[24:27], v6, s[{sWS}:{sWS+3}], 0 offen offset:16 sc1")
    e(f"    ds_write_b64 v8, v[16:17] offset:{L_TAG}")
    stamp(10)
    e("    s_lshl_b32 s60, s52, 14")
    e("    s_lshl_b32 s61, s54, 10")
    e("    s_add_u32 s60, s60, s61")
    e("    v_lshl_add_u32 v6, v1, 4, s60")
    e("    v_lshl_add_u32 v7, v1, 11, s60")
    light_poll("L_lp1", 7, 8, 16, 17, 70)
    e("    s_mov_b32 s64, 0")
    e("L_poll1:")
    for jj in range(8):
        e(f"    s_mov_b32 s61, {(jj//2)*4096}")
        e(f"    buffer_load_dwordx4 v[{32+4*jj}:{35+4*jj}], v6, s[{sWS}:{sWS+3}], s61 offen offset:{(jj%2)*2048} sc1")
    e("    s_waitcnt vmcnt(0)")
    tagcheck([32 + 4 * jj for jj in range(8)], 16, 17, 70)
    spin_tail("L_poll1")
    stamp(11)
    for st in (4, 2, 1):
        for p in range(st):
            e(f"    v_add_f32 v{32+4*p}, v{32+4*p}, v{32+4*(p+st)}")
            e(f"    v_add_f32 v{33+4*p}, v{33+4*p}, v{33+4*(p+st)}")
    e("    v_cvt_pk_bf16_f32 v20, v32, v33")
    e("    v_lshlrev_b32 v6, 2, v1")
    e(f"    ds_write_b32 v6, v20 offset:{L_QBF}")
    e("    v_mov_b32 v9, 1")
    e(f"    ds_write_b32 v8, v9 offset:{L_QFLAG}")
    e("    s_waitcnt lgkmcnt(0)")
    e("    s_barrier                          ; B")
    stamp(12)
    dump_stamps([10, 11, 12])
    e("L_end:")
    e("    s_endpgm")
    e('.section .rodata,"a"')
    e(".p2align 6")
    e(f".amdhsa_kernel {NAME}")
    e(f"  .amdhsa_next_free_vgpr {NVGPR}")
    e("  .amdhsa_next_free_sgpr 102")
    e(f"  .amdhsa_accum_offset {NVGPR}")
    e("  .amdhsa_group_segment_fixed_size 0")
    e("  .amdhsa_kernarg_size 64")
    e("  .amdhsa_user_sgpr_count 2")
    e("  .amdhsa_user_sgpr_kernarg_segment_ptr 1")
    e("  .amdhsa_system_sgpr_workgroup_id_x 1")
    e(".end_amdhsa_kernel")

gen()
path = sys.argv[1] if len(sys.argv) > 1 else "standalone__sliding_block_cached__decode.s"
open(path, "w").write("\n".join(out) + "\n")
print("wrote", path, len(out), "lines")
```

```python
import sys, os, struct

NAME = "standalone__sliding_block_cached__decode_kernel"
WS_QP = 0
WS_OP = 512 * 1024
WS_YP = 1024 * 1024
WS_BYTES = 1536 * 1024
WS_ST = 2 * 1024 * 1024

L_QBF = 0
L_WMAX = 256
L_TAG = 320
L_QFLAG = 336
L_OFIN = 512
L_OPART = 2560
L_LSUM = 6656
L_YPART = 7168
L_QPART = 2560
LDS_BYTES = 2560 + 16384

SPIN_MAX = 200000
STAMPS = int(os.environ.get("STAMPS", "0"))
NT = os.environ.get("NT", "nt")
D = int(os.environ.get("D", "2"))
D0 = int(os.environ.get("D0", "4"))
NOBURST = int(os.environ.get("NOBURST", "0"))
PRIO = int(os.environ.get("PRIO", "0"))
NTW = os.environ.get("NTW", NT)
SLP = int(os.environ.get("SLP", "1"))
D2 = int(os.environ.get("D2", "0"))
BURST = int(os.environ.get("BURST", "12"))
if STAMPS:
    WS_BYTES = 3 * 1024 * 1024

out = []
def e(s=""):
    out.append(s)

sK, sV, sWQ, sWO, sX, sWS, sOUT, sDBG = 20, 24, 28, 32, 36, 40, 44, 48

def stamp(k):
    if STAMPS:
        e(f"    s_memrealtime s[{76+2*k}:{77+2*k}]")
def dump_stamps(ks):
    if not STAMPS:
        return
    if STAMPS == 2:
        e("    s_waitcnt lgkmcnt(0)")
        e("    s_cmp_lg_u32 s2, 0")
        e("    s_cbranch_scc1 L_end")
        e("    s_mov_b64 exec, 1")
        e("    v_mov_b32 v5, 0")
        for k in ks:
            e(f"    s_sub_u32 s60, s{76+2*k}, s76")
            e(f"    v_mov_b32 v6, s60")
            e(f"    buffer_store_dword v6, v5, s[{sDBG}:{sDBG+3}], 0 offen offset:{8+4*k}")
            e("    s_nop 1")
        return
    e("    s_waitcnt lgkmcnt(0)")
    e("    s_mov_b64 exec, 1")
    e("    s_lshl_b32 s60, s2, 7")
    e(f"    s_add_u32 s60, s60, {WS_ST}")
    e("    v_mov_b32 v5, s60")
    for k in ks:
        e(f"    v_mov_b32 v6, s{76+2*k}")
        e(f"    v_mov_b32 v7, s{77+2*k}")
        e(f"    buffer_store_dwordx2 v[6:7], v5, s[{sWS}:{sWS+3}], 0 offen offset:{8*k}")
        e("    s_nop 1")

def srd(d, p, nbytes):
    e(f"    s_mov_b32 s{d}, s{p}")
    e(f"    s_and_b32 s{d+1}, s{p+1}, 0xffff")
    e(f"    s_mov_b32 s{d+2}, {nbytes:#x}")
    e(f"    s_mov_b32 s{d+3}, 0x00020000")

vK = 16; vV = 48; vWO = 80; vA = 96; vS = 112; vQ = 120; vT = 124
vWQ = 128
vX = 140
vXH = 146
NVGPR = 168
XS = 88
vTAG = 152

queue = []
BURST_INFO = []
def issued(tag):
    queue.append(tag)
def wait_for(tag):
    n = len(queue) - 1 - queue.index(tag)
    e(f"    s_waitcnt vmcnt({n})")

def issue_stream(tag):
    kind, i = tag
    if kind == "k":
        e(f"    buffer_load_dwordx4 v[{vK+4*i}:{vK+4*i+3}], v{11 if i<4 else 12}, s[{sK}:{sK+3}], 0 offen offset:{(i%4)*1024} {NT}")
    elif kind == "v":
        e(f"    buffer_load_dwordx4 v[{vV+4*i}:{vV+4*i+3}], v{11 if i<4 else 12}, s[{sV}:{sV+3}], 0 offen offset:{(i%4)*1024} {NT}")
    else:
        e("    s_mov_b64 exec, s[70:71]")
        e(f"    buffer_load_dwordx4 v[{vWO+4*i}:{vWO+4*i+3}], v15, s[{sWO}:{sWO+3}], 0 offen offset:{i*1280} {NTW}")
        e("    s_mov_b64 exec, -1")
    issued(tag)

def tagcheck(granules, tl, th, tmp):
    first = True
    for g in granules:
        if first:
            e(f"    v_xor_b32 v{tmp}, v{g+2}, v{tl}")
            e(f"    v_xor_b32 v{tmp+1}, v{g+3}, v{th}")
            first = False
        else:
            e(f"    v_xor_b32 v{tmp+2}, v{g+2}, v{tl}")
            e(f"    v_xor_b32 v{tmp+3}, v{g+3}, v{th}")
            e(f"    v_or3_b32 v{tmp}, v{tmp}, v{tmp+2}, v{tmp+3}")
    e(f"    v_or_b32 v{tmp}, v{tmp}, v{tmp+1}")
    e(f"    v_cmp_ne_u32 s[74:75], 0, v{tmp}")

def spin_tail(lbl, slp=SLP):
    e("    s_add_u32 s64, s64, 1")
    e("    s_cmp_eq_u64 s[74:75], 0")
    e(f"    s_cbranch_scc1 {lbl}_done")
    e(f"    s_cmp_ge_u32 s64, {SPIN_MAX}")
    e(f"    s_cbranch_scc1 {lbl}_done")
    e(f"    s_sleep {slp}")
    e(f"    s_branch {lbl}")
    e(f"{lbl}_done:")

def light_poll(lbl, vaddr, nl, tl, th, tmp, slp=SLP):
    e(f"    s_mov_b64 s[72:73], exec")
    if nl <= 32:
        e(f"    s_mov_b64 exec, {(1<<nl)-1:#x}")
    e("    s_mov_b32 s64, 0")
    e(f"{lbl}:")
    e(f"    buffer_load_dwordx2 v[{tmp}:{tmp+1}], v{vaddr}, s[{sWS}:{sWS+3}], 0 offen offset:8 sc1")
    e("    s_waitcnt vmcnt(0)")
    e(f"    v_xor_b32 v{tmp}, v{tmp}, v{tl}")
    e(f"    v_xor_b32 v{tmp+1}, v{tmp+1}, v{th}")
    e(f"    v_or_b32 v{tmp}, v{tmp}, v{tmp+1}")
    e(f"    v_cmp_ne_u32 s[74:75], 0, v{tmp}")
    spin_tail(lbl, slp)
    e(f"    s_mov_b64 exec, s[72:73]")

def gen():
    e("; Fused decode attention (one launch): q-proj -> sliding-window attention (flash-decoding split) -> out-proj")
    e(f"; @launch grid=(256,1,1) block=(576,1,1) lds={LDS_BYTES}")
    e('.amdgcn_target "amdgcn-amd-amdhsa--gfx950"')
    e(".text")
    e(f".globl {NAME}")
    e(".p2align 8")
    e(f".type {NAME},@function")
    e(f"{NAME}:")
    e("    s_cmp_ge_u32 s2, 256")
    e("    s_cbranch_scc1 L_end")
    e("    s_load_dwordx16 s[4:19], s[0:1], 0")
    e("    v_and_b32 v1, 63, v0              ; lane")
    e("    v_lshrrev_b32 v2, 6, v0")
    e("    s_and_b32 s3, s2, 7")
    e("    v_readfirstlane_b32 s59, v2")
    e("    s_lshr_b32 s57, s2, 3")
    e("    s_lshr_b32 s58, s57, 3")
    e("    s_lshl_b32 s52, s3, 2")
    e("    s_add_u32 s52, s52, s58           ; h")
    e("    s_and_b32 s53, s57, 7             ; j")
    e("    s_lshr_b32 s54, s53, 2            ; b")
    e("    s_and_b32 s55, s53, 3             ; s")
    e("    v_lshrrev_b32 v3, 4, v1           ; g = lane/16")
    e("    v_and_b32 v4, 15, v1              ; c16")
    e("    s_waitcnt lgkmcnt(0)")
    srd(sX, 4, 2 * 640 * 2)
    srd(sK, 6, 2 * 32 * 4096 * 128 * 2)
    srd(sV, 8, 2 * 32 * 4096 * 128 * 2)
    srd(sWQ, 10, 640 * 4096 * 2)
    srd(sWO, 12, 4096 * 640 * 2)
    srd(sOUT, 14, 2 * 640 * 2)
    srd(sDBG, 16, 256)
    srd(sWS, 18, WS_BYTES)
    stamp(0)
    e("    s_cmp_eq_u32 s59, 8")
    e("    s_cbranch_scc1 L_control")
    e("    s_mul_i32 s60, s53, 80")
    e("    s_lshl_b32 s61, s59, 2")
    e("    s_add_u32 s60, s60, s61")
    e("    v_add_u32 v5, s60, v3             ; row_0")
    e("    v_lshlrev_b32 v6, 13, v5")
    e("    v_lshl_add_u32 v6, v4, 4, v6")
    e("    s_lshl_b32 s62, s52, 8")
    e("    v_add_u32 v6, s62, v6")
    e("    v_add_u32 v7, 0x40000, v6")
    e("    s_mov_b32 s63, 0x80000")
    e("    s_cmp_lt_u32 s59, 4")
    e("    s_cselect_b32 s63, s63, 0x7f000000")
    e("    v_add_u32 v8, s63, v6")
    for i in range(3):
        e(f"    buffer_load_dwordx4 v[{vWQ+4*i}:{vWQ+4*i+3}], v{6+i}, s[{sWQ}:{sWQ+3}], 0 offen {NTW}")
        issued(("wq", i))
    e("    s_lshl_b32 s61, s60, 1")
    for i in range(3):
        for bb in range(2):
            d = XS + 2 * (i * 2 + bb)
            if i < 2:
                e(f"    s_add_u32 s62, s61, {i*64 + bb*1280}")
            else:
                e(f"    s_add_u32 s62, s61, {128 + bb*1280}")
                e("    s_cmp_lt_u32 s59, 4")
                e("    s_cselect_b32 s62, s62, s61")
            e(f"    s_load_dwordx2 s[{d}:{d+1}], s[4:5], s62")
    e("    s_lshl_b32 s65, s54, 25")
    e("    s_lshl_b32 s66, s52, 20")
    e("    s_add_u32 s65, s65, s66")
    e("    s_lshl_b32 s66, s55, 16")
    e("    s_add_u32 s65, s65, s66")
    e("    s_add_u32 s65, s65, 0xc0000")
    e("    s_lshl_b32 s66, s59, 13")
    e("    s_add_u32 s65, s65, s66")
    e("    v_lshlrev_b32 v11, 4, v1")
    e("    v_add_u32 v11, s65, v11")
    e("    v_add_u32 v12, 0x1000, v11")
    e("    s_barrier")
    seq = [("k", i) for i in range(8)] + [("v", i) for i in range(8)] + [("wo", i) for i in range(4)]
    nxt = 0
    for _ in range(D0):
        issue_stream(seq[nxt]); nxt += 1
    e("    v_mov_b32 v13, v3")
    e("    v_mov_b32 v14, v4                 ; ch = lane%16 (active < 10)")
    e("    s_lshl_b32 s67, s52, 7")
    e("    s_lshl_b32 s68, s59, 4")
    e("    s_add_u32 s67, s67, s68           ; h*128 + 16w")
    e("    v_lshl_add_u32 v15, v13, 2, s67   ; row (i=0)")
    e("    v_mul_u32_u24 v15, 1280, v15")
    e("    v_lshl_add_u32 v15, v14, 4, v15")
    e("    s_mul_i32 s68, s53, 160")
    e("    v_add_u32 v15, s68, v15")
    e("    s_mov_b32 s70, 0x03ff03ff")
    e("    s_mov_b32 s71, 0x03ff03ff         ; lanes with lane%16 < 10")
    for a in range(16):
        e(f"    v_mov_b32 v{vA+a}, 0")
    e("    v_and_b32 v6, 1, v3")
    e("    v_lshlrev_b32 v6, 4, v6           ; 16*(g&1)")
    e("    v_cmp_gt_u32 vcc, 2, v3           ; g < 2")
    e("    s_waitcnt lgkmcnt(0)")
    e("    s_cmp_lt_u32 s59, 4")
    for k in (4, 5):
        e(f"    s_cselect_b32 s{XS+2*k}, s{XS+2*k}, 0")
        e(f"    s_cselect_b32 s{XS+2*k+1}, s{XS+2*k+1}, 0")
    for k in range(6):
        e(f"    v_mov_b32 v7, s{XS+2*k+1}")
        e(f"    v_mov_b32 v8, s{XS+2*k}")
        e(f"    v_cndmask_b32 v7, v7, v8, vcc")
        e(f"    v_lshrrev_b32 v7, v6, v7")
        e(f"    v_and_b32 v{vX+k}, 0xffff, v7")
        e(f"    v_lshlrev_b32 v{vXH+k}, 16, v7")
    wait_for(("wq", 2))
    stamp(1)
    for i in range(3):
        for bb in range(2):
            for ee in range(4):
                e(f"    v_dot2c_f32_bf16 v{vA+bb*8+2*ee}, v{vWQ+4*i+ee}, v{vX+i*2+bb}")
                e(f"    v_dot2c_f32_bf16 v{vA+bb*8+2*ee+1}, v{vWQ+4*i+ee}, v{vXH+i*2+bb}")
    e("    s_nop 2")
    for ee in range(8):
        e(f"    v_permlane32_swap_b32 v{vA+ee}, v{vA+ee+8}")
    for ee in range(8):
        e(f"    v_add_f32 v{vA+ee}, v{vA+ee}, v{vA+ee+8}")
    for ee in range(4):
        e(f"    v_permlane16_swap_b32 v{vA+ee}, v{vA+ee+4}")
    for ee in range(4):
        e(f"    v_add_f32 v{vA+ee}, v{vA+ee}, v{vA+ee+4}")
    e("    v_lshrrev_b32 v5, 1, v3")
    e("    v_lshlrev_b32 v5, 9, v5")
    e("    v_lshl_add_u32 v5, v4, 5, v5")
    e("    v_and_b32 v6, 1, v3")
    e("    v_lshl_add_u32 v5, v6, 4, v5")
    e("    s_lshl_b32 s60, s59, 10")
    e("    v_add_u32 v5, s60, v5")
    e(f"    ds_write_b128 v5, v[{vA}:{vA+3}] offset:{L_QPART}")
    e("    s_waitcnt lgkmcnt(0)")
    e("    s_barrier                          ; A")
    stamp(2)
    e("    v_mov_b32 v5, 0")
    start = nxt
    saved = list(queue)
    while nxt < len(seq):
        if nxt >= 8 + D:
            e(f"    ds_read_b32 v6, v5 offset:{L_QFLAG}")
        wait_for(seq[nxt - D])
        if nxt >= 8 + D:
            e("    s_waitcnt lgkmcnt(0)")
            e("    v_readfirstlane_b32 s60, v6")
            e(f"    s_mov_b32 s69, {nxt}")
            e("    s_cmp_lg_u32 s60, 0")
            e(f"    s_cbranch_scc1 L_qk")
        issue_stream(seq[nxt]); nxt += 1
    e("    s_mov_b32 s69, 20")
    e("    s_mov_b32 s64, 0")
    e("L_waitq:")
    e(f"    ds_read_b32 v6, v5 offset:{L_QFLAG}")
    e("    s_waitcnt lgkmcnt(0)")
    e("    v_cmp_eq_u32 s[74:75], 0, v6")
    spin_tail("L_waitq", 1)
    e("L_qk:")
    stamp(3)
    BURST_INFO.append((start, saved, seq))
    e("    v_lshlrev_b32 v5, 4, v4")
    e(f"    ds_read_b128 v[{vQ}:{vQ+3}], v5 offset:{L_QBF}")
    e("    v_mov_b32 v5, 0")
    e(f"    ds_read_b64 v[{vTAG}:{vTAG+1}], v5 offset:{L_TAG}")
    for i in range(8):
        e(f"    v_mov_b32 v{vS+i}, 0")
    e("    s_waitcnt lgkmcnt(0)")
    for i in range(8):
        for ee in range(4):
            e(f"    v_dot2c_f32_bf16 v{vS+i}, v{vK+4*i+ee}, v{vQ+ee}")
    e("    s_nop 2")
    for sh in (8, 4, 2, 1):
        for i in range(8):
            e(f"    v_add_f32_dpp v{vS+i}, v{vS+i}, v{vS+i} row_ror:{sh} row_mask:0xf bank_mask:0xf")
    c = (128 ** -0.5) * 1.4426950408889634
    cbits = struct.unpack("<I", struct.pack("<f", c))[0]
    e(f"    s_mov_b32 s60, {cbits:#x}")
    for i in range(8):
        e(f"    v_mul_f32 v{vS+i}, s60, v{vS+i}")
    e(f"    v_max3_f32 v6, v{vS}, v{vS+1}, v{vS+2}")
    e(f"    v_max3_f32 v7, v{vS+3}, v{vS+4}, v{vS+5}")
    e(f"    v_max3_f32 v6, v6, v{vS+6}, v{vS+7}")
    e("    v_max_f32 v6, v6, v7")
    e("    s_nop 1")
    e("    v_readlane_b32 s60, v6, 0")
    e("    v_readlane_b32 s61, v6, 16")
    e("    v_readlane_b32 s62, v6, 32")
    e("    v_readlane_b32 s63, v6, 48")
    e("    s_nop 1")
    e("    v_mov_b32 v7, s60")
    e("    v_max_f32 v7, s61, v7")
    e("    v_max_f32 v7, s62, v7")
    e("    v_max_f32 v7, s63, v7")
    e("    s_lshl_b32 s60, s59, 2")
    e("    v_mov_b32 v5, s60")
    e(f"    ds_write_b32 v5, v7 offset:{L_WMAX}")
    start, saved, seq = BURST_INFO[0]
    for k in range(8 + D, len(seq)):
        e(f"    s_cmp_eq_u32 s69, {k}")
        e(f"    s_cbranch_scc1 L_burst{k}")
    e("    s_branch L_issued")
    full = list(queue)
    queue[:] = full[:full.index(seq[8 + D])]
    for k in range(8 + D, len(seq)):
        e(f"L_burst{k}:")
        issue_stream(seq[k])
    assert queue == full
    e("L_issued:")
    e("    s_waitcnt lgkmcnt(0)")
    stamp(4)
    e("    s_barrier                          ; M")
    e("    v_mov_b32 v5, 0")
    e(f"    ds_read_b128 v[{vK}:{vK+3}], v5 offset:{L_WMAX}")
    e(f"    ds_read_b128 v[{vK+4}:{vK+7}], v5 offset:{L_WMAX+16}")
    e("    s_waitcnt lgkmcnt(0)")
    e(f"    v_max3_f32 v10, v{vK}, v{vK+1}, v{vK+2}")
    e(f"    v_max3_f32 v6, v{vK+3}, v{vK+4}, v{vK+5}")
    e(f"    v_max3_f32 v10, v10, v{vK+6}, v{vK+7}")
    e("    v_max_f32 v10, v10, v6")
    for i in range(8):
        e(f"    v_sub_f32 v{vS+i}, v{vS+i}, v10")
    for i in range(8):
        e(f"    v_exp_f32 v{vS+i}, v{vS+i}")
    e("    s_nop 0")
    for i in range(0, 8, 2):
        e(f"    v_cvt_pk_bf16_f32 v{vK+16+i//2}, v{vS+i}, v{vS+i+1}")
    vP = vK
    for i in range(0, 8, 2):
        P = vK + 16 + i // 2
        e(f"    v_and_b32 v{vP+2*i}, 0xffff, v{P}")
        e(f"    v_lshlrev_b32 v{vP+2*i+1}, 16, v{P}")
        e(f"    v_lshrrev_b32 v{vP+2*i+2}, 16, v{P}")
        e(f"    v_and_b32 v{vP+2*i+3}, 0xffff0000, v{P}")
    e(f"    v_add_f32 v6, v{vP+1}, v{vP+3}")
    e(f"    v_add_f32 v7, v{vP+5}, v{vP+7}")
    e(f"    v_add_f32 v8, v{vP+9}, v{vP+11}")
    e(f"    v_add_f32 v9, v{vP+13}, v{vP+15}")
    e("    v_add_f32 v6, v6, v7")
    e("    v_add_f32 v8, v8, v9")
    e("    v_add_f32 v9, v6, v8")
    e("    s_nop 1")
    e("    v_readlane_b32 s60, v9, 0")
    e("    v_readlane_b32 s61, v9, 16")
    e("    v_readlane_b32 s62, v9, 32")
    e("    v_readlane_b32 s63, v9, 48")
    e("    s_nop 1")
    e("    v_mov_b32 v9, s60")
    e("    v_add_f32 v9, s61, v9")
    e("    v_add_f32 v9, s62, v9")
    e("    v_add_f32 v9, s63, v9             ; wave l")
    e("    s_lshl_b32 s60, s59, 2")
    e("    v_mov_b32 v5, s60")
    e(f"    ds_write_b32 v5, v9 offset:{L_LSUM}")
    for a in range(8):
        e(f"    v_mov_b32 v{vA+a}, 0")
    for i in range(8):
        wait_for(("v", i))
        if nxt < len(seq):
            issue_stream(seq[nxt]); nxt += 1
        for ee in range(4):
            e(f"    v_dot2c_f32_bf16 v{vA+2*ee}, v{vV+4*i+ee}, v{vP+2*i}")
            e(f"    v_dot2c_f32_bf16 v{vA+2*ee+1}, v{vV+4*i+ee}, v{vP+2*i+1}")
    while nxt < len(seq):
        issue_stream(seq[nxt]); nxt += 1
    e("    s_nop 1")
    for ee in range(4):
        e(f"    v_permlane32_swap_b32 v{vA+ee}, v{vA+ee+4}")
    for ee in range(4):
        e(f"    v_add_f32 v{vA+ee}, v{vA+ee}, v{vA+ee+4}")
    e("    s_nop 0")
    e(f"    v_permlane16_swap_b32 v{vA}, v{vA+2}")
    e(f"    v_permlane16_swap_b32 v{vA+1}, v{vA+3}")
    e(f"    v_add_f32 v{vA}, v{vA}, v{vA+2}")
    e(f"    v_add_f32 v{vA+1}, v{vA+1}, v{vA+3}")
    e("    v_lshl_add_u32 v5, v4, 2, v3")
    e("    s_lshl_b32 s60, s59, 9")
    e("    v_lshl_add_u32 v5, v5, 3, s60")
    e(f"    ds_write_b64 v5, v[{vA}:{vA+1}] offset:{L_OPART}")
    e("    s_waitcnt lgkmcnt(0)")
    stamp(5)
    e("    s_barrier                          ; C")
    e("    s_cmp_ge_u32 s59, 2")
    e("    s_cbranch_scc1 L_wait_o")
    e("    s_lshl_b32 s60, s54, 5")
    e("    s_add_u32 s60, s60, s52")
    e("    s_lshl_b32 s60, s60, 2")
    e("    s_add_u32 s60, s60, s55")
    e("    s_lshl_b32 s60, s60, 11")
    e(f"    s_add_u32 s60, s60, {WS_OP}")
    e("    v_lshl_add_u32 v6, v0, 4, s60")
    e("    s_cmp_eq_u32 s59, 1")
    e("    s_cbranch_scc1 L_pubstats")
    e("    v_lshlrev_b32 v5, 3, v1")
    for p in range(8):
        e(f"    ds_read_b64 v[{vK+2*p}:{vK+2*p+1}], v5 offset:{L_OPART + p*512}")
    e("    s_waitcnt lgkmcnt(0)")
    for st in (4, 2, 1):
        for p in range(st):
            e(f"    v_add_f32 v{vK+2*p}, v{vK+2*p}, v{vK+2*(p+st)}")
            e(f"    v_add_f32 v{vK+2*p+1}, v{vK+2*p+1}, v{vK+2*(p+st)+1}")
    e(f"    v_mov_b32 v{vK+2}, v{vTAG}")
    e(f"    v_mov_b32 v{vK+3}, v{vTAG+1}")
    e(f"    buffer_store_dwordx4 v[{vK}:{vK+3}], v6, s[{sWS}:{sWS+3}], 0 offen sc1")
    stamp(6)
    e("    s_branch L_wait_o")
    e("L_pubstats:")
    e("    v_mov_b32 v5, 0")
    e(f"    ds_read_b128 v[{vK+4}:{vK+7}], v5 offset:{L_LSUM}")
    e(f"    ds_read_b128 v[{vK+8}:{vK+11}], v5 offset:{L_LSUM+16}")
    e("    s_waitcnt lgkmcnt(0)")
    for p in range(4):
        e(f"    v_add_f32 v{vK+4+p}, v{vK+4+p}, v{vK+8+p}")
    e(f"    v_add_f32 v{vK+4}, v{vK+4}, v{vK+6}")
    e(f"    v_add_f32 v{vK+5}, v{vK+5}, v{vK+7}")
    e(f"    v_add_f32 v{vK}, v{vK+4}, v{vK+5}")
    e(f"    v_mov_b32 v{vK+1}, v10")
    e(f"    v_mov_b32 v{vK+2}, v{vTAG}")
    e(f"    v_mov_b32 v{vK+3}, v{vTAG+1}")
    e("    s_mov_b64 exec, 1")
    e(f"    buffer_store_dwordx4 v[{vK}:{vK+3}], v6, s[{sWS}:{sWS+3}], 0 offen sc1")
    e("    s_mov_b64 exec, -1")
    e("    s_branch L_wait_o")
    e("L_wait_o:")
    e("    s_lshl_b32 s60, s59, 7            ; 16w*8")
    e("    v_lshl_add_u32 v5, v13, 5, s60")
    for a_ in range(16):
        e(f"    v_mov_b32 v{vA+a_}, 0")
    e("    v_lshrrev_b32 v8, 1, v3")
    e("    v_mul_u32_u24 v8, 320, v8")
    e("    v_lshl_add_u32 v8, v4, 5, v8")
    e("    v_and_b32 v6, 1, v3")
    e("    v_lshl_add_u32 v8, v6, 4, v8")
    e("    s_mul_i32 s60, s59, 640")
    e("    v_add_u32 v8, s60, v8")
    e("    v_lshlrev_b32 v9, 3, v0           ; t*8")
    e("    s_lshl_b32 s60, s53, 5")
    e("    s_add_u32 s60, s60, s52")
    e("    s_lshl_b32 s60, s60, 11")
    e(f"    s_add_u32 s60, s60, {WS_YP}")
    e("    v_lshl_add_u32 v7, v0, 4, s60")
    e("    s_waitcnt vmcnt(0)")
    e("    s_barrier")
    stamp(7)
    e("    s_mov_b64 exec, s[70:71]")
    e(f"    ds_read_b128 v[{vK}:{vK+3}], v5 offset:{L_OFIN}")
    e(f"    ds_read_b128 v[{vK+4}:{vK+7}], v5 offset:{L_OFIN+16}")
    e(f"    ds_read_b128 v[{vK+8}:{vK+11}], v5 offset:{L_OFIN+1024}")
    e(f"    ds_read_b128 v[{vK+12}:{vK+15}], v5 offset:{L_OFIN+1040}")
    e("    s_waitcnt lgkmcnt(0)")
    for r in range(4):
        for bb in range(2):
            lo = vK + bb * 8 + r * 2
            for ee in range(4):
                e(f"    v_dot2c_f32_bf16 v{vA+bb*8+2*ee}, v{vWO+4*r+ee}, v{lo}")
                e(f"    v_dot2c_f32_bf16 v{vA+bb*8+2*ee+1}, v{vWO+4*r+ee}, v{lo+1}")
    e("    s_mov_b64 exec, -1")
    e("    s_nop 1")
    for ee in range(8):
        e(f"    v_permlane32_swap_b32 v{vA+ee}, v{vA+ee+8}")
    for ee in range(8):
        e(f"    v_add_f32 v{vA+ee}, v{vA+ee}, v{vA+ee+8}")
    for ee in range(4):
        e(f"    v_permlane16_swap_b32 v{vA+ee}, v{vA+ee+4}")
    for ee in range(4):
        e(f"    v_add_f32 v{vA+ee}, v{vA+ee}, v{vA+ee+4}")
    e("    s_mov_b64 exec, s[70:71]")
    e(f"    ds_write_b128 v8, v[{vA}:{vA+3}] offset:{L_YPART}")
    e("    s_mov_b64 exec, -1")
    e("    s_waitcnt lgkmcnt(0)")
    e("    s_barrier                          ; D")
    e("    s_cmp_ge_u32 s59, 2")
    e("    s_cbranch_scc1 L_end")
    for p in range(8):
        e(f"    ds_read_b64 v[{vK+2*p}:{vK+2*p+1}], v9 offset:{L_YPART + p*640}")
    e("    s_waitcnt lgkmcnt(0)")
    for st in (4, 2, 1):
        for p in range(st):
            e(f"    v_add_f32 v{vK+2*p}, v{vK+2*p}, v{vK+2*(p+st)}")
            e(f"    v_add_f32 v{vK+2*p+1}, v{vK+2*p+1}, v{vK+2*(p+st)+1}")
    e(f"    v_mov_b32 v{vK+2}, v{vTAG}")
    e(f"    v_mov_b32 v{vK+3}, v{vTAG+1}")
    e("    v_cmp_gt_u32 vcc, 80, v0")
    e("    s_and_saveexec_b64 s[72:73], vcc")
    e(f"    buffer_store_dwordx4 v[{vK}:{vK+3}], v7, s[{sWS}:{sWS+3}], 0 offen sc1")
    e("    s_mov_b64 exec, -1")
    stamp(8)
    e("    s_cmp_lg_u32 s59, 0")
    e("    s_cbranch_scc1 L_end")
    e("    s_cmp_ge_u32 s52, 20")
    e("    s_cbranch_scc1 L_dump0" if STAMPS else "    s_cbranch_scc1 L_end")
    e("    s_lshl_b32 s60, s53, 16")
    e(f"    s_add_u32 s60, s60, {WS_YP}")
    e("    s_lshl_b32 s61, s52, 6")
    e("    s_add_u32 s60, s60, s61")
    e("    v_and_b32 v5, 31, v1")
    e("    v_lshl_add_u32 v5, v5, 11, s60")
    e("    v_lshrrev_b32 v6, 5, v1")
    e("    v_lshl_add_u32 v5, v6, 5, v5")
    e("    s_mov_b32 s64, 0")
    e("L_poll3:")
    e(f"    buffer_load_dwordx4 v[16:19], v5, s[{sWS}:{sWS+3}], 0 offen sc1")
    e(f"    buffer_load_dwordx4 v[20:23], v5, s[{sWS}:{sWS+3}], 0 offen offset:16 sc1")
    e("    s_waitcnt vmcnt(0)")
    tagcheck([16, 20], vTAG, vTAG + 1, 24)
    spin_tail("L_poll3")
    e("    v_mov_b32 v18, v20")
    e("    v_mov_b32 v19, v21")
    e("    s_nop 1")
    for sh in (8, 4, 2, 1):
        for r in range(4):
            e(f"    v_add_f32_dpp v{16+r}, v{16+r}, v{16+r} row_ror:{sh} row_mask:0xf bank_mask:0xf")
    for r in range(4):
        e(f"    v_mov_b32 v{20+r}, v{16+r}")
    e("    s_nop 1")
    for r in range(4):
        e(f"    v_permlane16_swap_b32 v{16+r}, v{20+r}")
    for r in range(4):
        e(f"    v_add_f32 v{16+r}, v{16+r}, v{20+r}")
    e("    v_cvt_pk_bf16_f32 v16, v16, v17")
    e("    v_cvt_pk_bf16_f32 v17, v18, v19")
    e("    s_lshl_b32 s60, s52, 3")
    e("    s_mul_i32 s61, s53, 80")
    e("    s_add_u32 s60, s60, s61")
    e("    s_add_u32 s61, s60, 560")
    e("    s_cmp_ge_u32 s52, 10")
    e("    s_cselect_b32 s60, s61, s60")
    e("    v_lshl_add_u32 v7, v6, 2, s60")
    e("    v_lshlrev_b32 v7, 1, v7")
    e("    s_mov_b32 s72, 1")
    e("    s_mov_b32 s73, 1")
    e("    s_mov_b64 exec, s[72:73]")
    e(f"    buffer_store_dwordx2 v[16:17], v7, s[{sOUT}:{sOUT+3}], 0 offen")
    e("    s_mov_b64 exec, -1")
    stamp(9)
    if STAMPS:
        e("L_dump0:")
        e("    s_cmp_lg_u32 s59, 0")
        e("    s_cbranch_scc1 L_end")
        dump_stamps(list(range(10)))
    e("    s_branch L_end")
    e("L_control:")
    if PRIO:
        e("    s_setprio 3")
    e("    v_mov_b32 v8, 0")
    e("    s_cmp_lg_u32 s2, 0")
    e("    s_cbranch_scc1 L_nononce")
    e("    s_memrealtime s[62:63]")
    e("    s_waitcnt lgkmcnt(0)")
    e("    s_or_b32 s63, s63, 0x80000000")
    e("    v_mov_b32 v10, s62")
    e("    v_mov_b32 v11, s63")
    e("    s_mov_b64 exec, 1")
    e(f"    buffer_store_dwordx2 v[10:11], v8, s[{sDBG}:{sDBG+3}], 0 offen sc1")
    e("    s_mov_b64 exec, -1")
    e("L_nononce:")
    e(f"    ds_write_b32 v8, v8 offset:{L_QFLAG}")
    e("    s_waitcnt lgkmcnt(0)")
    e("    v_lshlrev_b32 v5, 4, v1")
    e("    s_barrier")
    e("    s_barrier                          ; A")
    e(f"    buffer_load_dwordx2 v[16:17], v8, s[{sDBG}:{sDBG+3}], 0 offen sc1")
    for p in range(8):
        e(f"    ds_read_b128 v[{20+4*p}:{23+4*p}], v5 offset:{L_QPART + p*1024}")
    e("    s_waitcnt lgkmcnt(0)")
    for st in (4, 2, 1):
        for p in range(st):
            for ee in range(4):
                e(f"    v_add_f32 v{20+4*p+ee}, v{20+4*p+ee}, v{20+4*(p+st)+ee}")
    e("    s_mov_b32 s64, 0")
    e("    s_branch L_poll0_chk")
    e("L_poll0:")
    e(f"    buffer_load_dwordx2 v[16:17], v8, s[{sDBG}:{sDBG+3}], 0 offen sc1")
    e("L_poll0_chk:")
    e("    s_waitcnt vmcnt(0)")
    e("    v_cmp_eq_u32 s[74:75], 0, v17")
    spin_tail("L_poll0", 2)
    e("    v_mov_b32 v24, v22")
    e("    v_mov_b32 v25, v23")
    e("    v_mov_b32 v22, v16")
    e("    v_mov_b32 v23, v17")
    e("    v_mov_b32 v26, v16")
    e("    v_mov_b32 v27, v17")
    e("    s_lshl_b32 s60, s52, 3")
    e("    s_add_u32 s60, s60, s53")
    e("    s_lshl_b32 s60, s60, 11")
    e("    v_lshl_add_u32 v6, v1, 5, s60")
    e(f"    buffer_store_dwordx4 v[20:23], v6, s[{sWS}:{sWS+3}], 0 offen sc1")
    e(f"    buffer_store_dwordx4 v[24:27], v6, s[{sWS}:{sWS+3}], 0 offen offset:16 sc1")
    e(f"    ds_write_b64 v8, v[16:17] offset:{L_TAG}")
    stamp(10)
    e("    s_lshl_b32 s60, s52, 14")
    e("    s_lshl_b32 s61, s54, 10")
    e("    s_add_u32 s60, s60, s61")
    e("    v_lshl_add_u32 v6, v1, 4, s60")
    e("    v_lshl_add_u32 v7, v1, 11, s60")
    light_poll("L_lp1", 7, 8, 16, 17, 70)
    e("    s_mov_b32 s64, 0")
    e("L_poll1:")
    for jj in range(8):
        e(f"    s_mov_b32 s61, {(jj//2)*4096}")
        e(f"    buffer_load_dwordx4 v[{32+4*jj}:{35+4*jj}], v6, s[{sWS}:{sWS+3}], s61 offen offset:{(jj%2)*2048} sc1")
    e("    s_waitcnt vmcnt(0)")
    tagcheck([32 + 4 * jj for jj in range(8)], 16, 17, 70)
    spin_tail("L_poll1")
    stamp(11)
    for st in (4, 2, 1):
        for p in range(st):
            e(f"    v_add_f32 v{32+4*p}, v{32+4*p}, v{32+4*(p+st)}")
            e(f"    v_add_f32 v{33+4*p}, v{33+4*p}, v{33+4*(p+st)}")
    e("    v_cvt_pk_bf16_f32 v20, v32, v33")
    e("    v_lshlrev_b32 v6, 2, v1")
    e(f"    ds_write_b32 v6, v20 offset:{L_QBF}")
    e("    v_mov_b32 v9, 1")
    e("    s_waitcnt lgkmcnt(0)")
    e(f"    ds_write_b32 v8, v9 offset:{L_QFLAG}")
    e("    s_waitcnt lgkmcnt(0)")
    stamp(12)
    e(f"    v_mov_b32 v{vTAG}, v16")
    e(f"    v_mov_b32 v{vTAG+1}, v17")
    e("    s_barrier                          ; M")
    e("    s_barrier                          ; C")
    e("L_poller:")
    if PRIO:
        e("    s_setprio 3")
    e("    s_lshl_b32 s60, s52, 13           ; h*4*2048")
    e(f"    s_add_u32 s60, s60, {WS_OP}")
    e("    v_and_b32 v5, 31, v1")
    e("    v_lshl_add_u32 v5, v5, 5, s60")
    e("    v_lshrrev_b32 v6, 5, v1")
    e("    v_lshlrev_b32 v6, 18, v6          ; b*32*4*2048")
    e("    v_add_u32 v5, v5, v6")
    e("    v_add_u32 v6, s60, v6")
    e("    v_add_u32 v7, 0x1000, v5")
    e("    v_add_u32 v8, 0x1000, v6")
    e("    v_lshrrev_b32 v9, 2, v1")
    e("    v_lshlrev_b32 v9, 18, v9")
    e("    v_and_b32 v2, 3, v1")
    e("    v_lshl_add_u32 v9, v2, 11, v9")
    e("    v_add_u32 v9, s60, v9")
    e("    v_add_u32 v9, 0x400, v9")
    light_poll("L_lp2", 9, 8, vTAG, vTAG + 1, vS)
    e("    s_mov_b32 s64, 0")
    e("L_poll2:")
    G = []
    for ss in range(4):
        for hf in range(2):
            r = vK + (ss * 2 + hf) * 4
            e(f"    buffer_load_dwordx4 v[{r}:{r+3}], v{5 if ss<2 else 7}, s[{sWS}:{sWS+3}], 0 offen offset:{(ss%2)*2048+hf*16} sc1")
            G.append(r)
    for ss in range(4):
        r = vK + 32 + ss * 4
        e(f"    buffer_load_dwordx4 v[{r}:{r+3}], v{6 if ss<2 else 8}, s[{sWS}:{sWS+3}], 0 offen offset:{(ss%2)*2048+1024} sc1")
        G.append(r)
    e("    s_waitcnt vmcnt(0)")
    tagcheck(G, vTAG, vTAG + 1, vS)
    spin_tail("L_poll2")
    l = [vK + 32 + 4 * ss for ss in range(4)]
    m = [x + 1 for x in l]
    def oreg(ss, r):
        return vK + (ss * 2 + r // 2) * 4 + (r % 2)
    T = vA
    e(f"    v_max3_f32 v9, v{m[0]}, v{m[1]}, v{m[2]}")
    e(f"    v_max_f32 v9, v9, v{m[3]}")
    for ss in range(4):
        e(f"    v_sub_f32 v{T+ss}, v{m[ss]}, v9")
    for ss in range(4):
        e(f"    v_exp_f32 v{T+ss}, v{T+ss}")
    e("    s_nop 0")
    e(f"    v_mul_f32 v9, v{T}, v{l[0]}")
    for ss in range(1, 4):
        e(f"    v_fmac_f32 v9, v{T+ss}, v{l[ss]}")
    e("    v_rcp_f32 v9, v9")
    for r in range(4):
        e(f"    v_mul_f32 v{T+4+r}, v{T}, v{oreg(0, r)}")
        for ss in range(1, 4):
            e(f"    v_fmac_f32 v{T+4+r}, v{T+ss}, v{oreg(ss, r)}")
    for r in range(4):
        e(f"    v_mul_f32 v{T+4+r}, v{T+4+r}, v9")
    e(f"    v_cvt_pk_bf16_f32 v{T+8}, v{T+4}, v{T+5}")
    e(f"    v_cvt_pk_bf16_f32 v{T+9}, v{T+6}, v{T+7}")
    for p in range(2):
        base = vS + 4 * p
        e(f"    v_and_b32 v{base}, 0xffff, v{T+8+p}")
        e(f"    v_lshlrev_b32 v{base+1}, 16, v{T+8+p}")
        e(f"    v_lshrrev_b32 v{base+2}, 16, v{T+8+p}")
        e(f"    v_and_b32 v{base+3}, 0xffff0000, v{T+8+p}")
    e("    v_lshlrev_b32 v5, 5, v1")
    e(f"    ds_write_b128 v5, v[{vS}:{vS+3}] offset:{L_OFIN}")
    e(f"    ds_write_b128 v5, v[{vS+4}:{vS+7}] offset:{L_OFIN+16}")
    e("    s_waitcnt lgkmcnt(0)")
    e("    s_barrier                          ; O")
    dump_stamps([10, 11, 12])
    e("L_end:")
    e("    s_endpgm")
    e('.section .rodata,"a"')
    e(".p2align 6")
    e(f".amdhsa_kernel {NAME}")
    e(f"  .amdhsa_next_free_vgpr {NVGPR}")
    e("  .amdhsa_next_free_sgpr 102")
    e(f"  .amdhsa_accum_offset {NVGPR}")
    e("  .amdhsa_group_segment_fixed_size 0")
    e("  .amdhsa_kernarg_size 64")
    e("  .amdhsa_user_sgpr_count 2")
    e("  .amdhsa_user_sgpr_kernarg_segment_ptr 1")
    e("  .amdhsa_system_sgpr_workgroup_id_x 1")
    e(".end_amdhsa_kernel")

gen()
path = sys.argv[1] if len(sys.argv) > 1 else "standalone__sliding_block_cached__decode.s"
open(path, "w").write("\n".join(out) + "\n")
print("wrote", path, len(out), "lines")
```
